```python
import torch

def _softmax(x, axis=-1):
    return torch.softmax(x, dim=axis)
def _gelu(x):
    return torch.nn.functional.gelu(x, approximate="tanh")
def _silu(x):
    return torch.nn.functional.silu(x)
def _sigmoid(x):
    return torch.sigmoid(x)
def _layernorm(x, axis=-1, eps=1e-5):
    m = x.mean(dim=axis, keepdim=True)
    v = x.var(dim=axis, keepdim=True, unbiased=False)
    return (x - m) / torch.sqrt(v + eps)
def _scatter_add(tgt, idx, src, axis=0):
    return tgt.clone().index_add_(axis, idx, src)
def _segment_sum(src, seg, n):
    out = torch.zeros((n,) + src.shape[1:], dtype=src.dtype)
    return out.index_add_(0, seg, src)
def _pad(x, pw):
    flat = tuple(v for pair in reversed(pw) for v in pair)
    return torch.nn.functional.pad(x, flat)

kernel_name = 'sequential_preLN__grouped_kv_mqa__moe_arch_mod__prompt'

def setup_inputs():

    _w = (lambda a: (lambda t: t.to(torch.bfloat16) if t.is_floating_point() else t)(torch.as_tensor(a)))
    def _A_setup():
        B, S, D, H = 1, 2048, 512, 32
        Dh = D // H
        return {
            "x": _w((lambda *s: torch.randn(*s, dtype=torch.bfloat16) * 0.05)(B, S, D)),
            "wq": _w((lambda *s: torch.randn(*s, dtype=torch.bfloat16) * 0.2)(D, H * Dh)),
            "wk": _w((lambda *s: torch.randn(*s, dtype=torch.bfloat16) * 0.2)(D, Dh)),
            "wv": _w((lambda *s: torch.randn(*s, dtype=torch.bfloat16) * 0.2)(D, Dh)),
            "wo": _w((lambda *s: torch.randn(*s, dtype=torch.bfloat16) * 0.2)(H * Dh, D)),
        }
    _A_in = _A_setup()

    def _B_setup():
        B, S, D, F, C = 1, 2048, 512, 1792, 2
        return {
            "x": _w((lambda *s: torch.randn(*s, dtype=torch.bfloat16) * 0.05)(B, S, D)),
            "w_r": _w((lambda *s: torch.randn(*s, dtype=torch.bfloat16) * 0.2)(D)),
            "w_gate": _w((lambda *s: torch.randn(*s, dtype=torch.bfloat16) * 0.2)(D, F)),
            "w_up": _w((lambda *s: torch.randn(*s, dtype=torch.bfloat16) * 0.2)(D, F)),
            "w_down": _w((lambda *s: torch.randn(*s, dtype=torch.bfloat16) * 0.2)(F, D)),
        }
    _B_in = _B_setup()

    return {
        "A_x": _A_in["x"],
        "A_wq": _A_in["wq"],
        "A_wk": _A_in["wk"],
        "A_wv": _A_in["wv"],
        "A_wo": _A_in["wo"],
        "B_x": _B_in["x"],
        "B_w_r": _B_in["w_r"],
        "B_w_gate": _B_in["w_gate"],
        "B_w_up": _B_in["w_up"],
        "B_w_down": _B_in["w_down"],
    }

def reference(A_x, A_wq, A_wk, A_wv, A_wo, B_x, B_w_r, B_w_gate, B_w_up, B_w_down):
    def _A_ref(x, wq, wk, wv, wo):
        B, S, D = x.shape
        H = 32
        Dh = D // H
        q = (lambda x, *d: x.permute(*d))((x @ wq).reshape(B, S, H, Dh), 0, 2, 1, 3)
        k = x @ wk
        v = x @ wv
        scores = torch.einsum("bhqd,bkd->bhqk", q, k) * (Dh ** -0.5)
        p = _softmax(scores, axis=-1)
        o = torch.einsum("bhqk,bkd->bhqd", p, v)
        return (lambda x, *d: x.permute(*d))(o, 0, 2, 1, 3).reshape(B, S, H * Dh) @ wo

    def _B_ref(x, w_r, w_gate, w_up, w_down):
        B, S, D = x.shape
        C = 2
        r = x @ w_r
        idx = torch.argsort(-r, axis=-1)[:, :C]
        idx_e = (lambda x, n, axis: torch.repeat_interleave(x, n, dim=axis))(idx.reshape(B, C, 1), D, axis=2)
        x_sel = (lambda x, i, axis: torch.take_along_dim(x, i, dim=axis))(x, idx_e, axis=1)
        g = _silu(x_sel @ w_gate)
        u = x_sel @ w_up
        y = (g * u) @ w_down
        r_sel = _sigmoid((lambda x, i, axis: torch.take_along_dim(x, i, dim=axis))(r, idx, axis=1))
        y = y * r_sel.reshape(B, C, 1)
        b_off = (torch.arange(B) * S).reshape(B, 1)
        flat_idx = (idx + b_off).reshape(B * C)
        zero = (x * 0.0).reshape(B * S, D)
        upd = _scatter_add(zero, flat_idx, y.reshape(B * C, D), axis=0)
        return x + upd.reshape(B, S, D)

    x = A_x
    h = x + _A_ref(_layernorm(x, axis=-1), A_wq, A_wk, A_wv, A_wo)
    h2 = h + _B_ref(_layernorm(h, axis=-1), B_w_r, B_w_gate, B_w_up, B_w_down)
    return h2
```

```python
import sys, struct, math
NAME = "sequential_preLN__grouped_kv_mqa__moe_arch_mod__prompt"
def f32(x): return '0x%08x' % struct.unpack('<I', struct.pack('<f', x))[0]
class Kern:
    def __init__(s, name, grid, block, lds, vgpr, sgpr=80):
        s.name = name; s.grid = grid; s.block = block; s.lds = lds; s.vgpr = vgpr; s.sgpr = sgpr; s.L = []
    def __call__(s, t):
        for line in t.strip('\n').split('\n'):
            line = line.strip()
            if line: s.L.append(line if line.endswith(':') else '    ' + line)
    def srd(s, d, base, size):
        s(f"s_mov_b32 s{d}, s{base}\ns_and_b32 s{d+1}, s{base+1}, 0xffff\ns_mov_b32 s{d+2}, {size}\ns_mov_b32 s{d+3}, 0x00020000")
    def text(s):
        return f".globl {s.name}\n.p2align 8\n.type {s.name},@function\n{s.name}:\n" + '\n'.join(s.L) + '\n'
    def desc(s):
        acc = min(256, (s.vgpr + 3) // 4 * 4)
        return f""".amdhsa_kernel {s.name}
  .amdhsa_next_free_vgpr {s.vgpr}
  .amdhsa_next_free_sgpr {s.sgpr}
  .amdhsa_accum_offset {acc}
  .amdhsa_group_segment_fixed_size 0
  .amdhsa_kernarg_size 104
  .amdhsa_user_sgpr_count 2
  .amdhsa_user_sgpr_kernarg_segment_ptr 1
  .amdhsa_system_sgpr_workgroup_id_x 1
.end_amdhsa_kernel
"""
def vr(a, n): return f"v[{a}:{a+n-1}]"
KVF = 0; QF = 0x20000; WOT = QF + 0x200000; OB = WOT + 0x80000; HN = OB + 0x200000
KEY = HN + 0x200000; ACT = KEY + 0x2000; TOP = ACT + 0x2000; WS_SIZE = TOP + 0x1000
CSCALE = 0.25 * math.log2(math.e)
OFF = 96.0

def allreduce_halves(k, v, t, op='v_add_f32'):
    k(f"v_mov_b32 v{t}, v{v}\ns_nop 1\nv_permlane32_swap_b32 v{v}, v{t}\n{op} v{v}, v{v}, v{t}")

def ids(k):
    k("""
    v_lshrrev_b32 v1, 6, v0
    s_and_b32 s37, s2, 7
    v_readfirstlane_b32 s36, v1
    s_lshl_b32 s37, s37, 2
    s_bfe_u32 s39, s2, 0x20003
    s_add_u32 s37, s37, s39
    s_lshr_b32 s38, s2, 5
    v_and_b32 v1, 63, v0
    """)

def k1():
    k = Kern('qkv_kernel', 256, 512, 163840, 128)
    XS, WSL, WKV, EX = 0, 65536, 131072, 147456
    X2 = EX + 8192; CSX = X2 + 256; STX = CSX + 1024
    k("""
    s_cmp_ge_u32 s2, 256
    s_cbranch_scc1 K1_END
    s_load_dwordx8 s[4:11], s[0:1], 0
    s_load_dwordx2 s[12:13], s[0:1], 32
    s_load_dwordx2 s[14:15], s[0:1], 96
    """)
    ids(k)
    k("""
    v_lshrrev_b32 v12, 3, v0
    v_and_b32 v13, 7, v0              ; p
    v_bfe_u32 v14, v12, 1, 3
    v_xor_b32 v14, v14, v13
    v_lshlrev_b32 v14, 4, v14
    v_lshl_add_u32 v2, v12, 10, v14   ; vX
    v_bfe_u32 v14, v12, 1, 1
    v_lshlrev_b32 v14, 2, v14
    v_xor_b32 v14, v14, v13
    v_lshlrev_b32 v14, 4, v14
    v_lshl_add_u32 v3, v12, 10, v14   ; vW
    s_mov_b32 s40, 0x3f803f80
    s_lshl_b32 s41, s37, 16
    s_lshl_b32 s42, s38, 7
    s_lshl_b32 s43, s36, 10           ; w*1024
    s_waitcnt lgkmcnt(0)
    """)
    k.srd(16, 4, 2097152); k.srd(20, 6, 524288)
    k("s_bitcmp1_b32 s38, 0\ns_cselect_b32 s24, s10, s8\ns_cselect_b32 s25, s11, s9\ns_and_b32 s25, s25, 0xffff\ns_mov_b32 s26, 16384\ns_mov_b32 s27, 0x00020000")
    k.srd(28, 14, WS_SIZE); k.srd(32, 12, 524288)
    k(f"""
    s_cmp_eq_u32 s36, 3
    s_cbranch_scc0 K1_NOWL
    s_and_b32 s46, s2, 31                       ; ct
    s_lshr_b32 s47, s46, 2
    s_lshl_b32 s47, s47, 7                      ; 64W*2 bytes
    s_and_b32 s46, s46, 3
    s_lshl_b32 s46, s46, 1
    s_add_u32 s46, s46, s47
    s_lshr_b32 s47, s2, 5
    s_lshl_b32 s47, s47, 16                     ; s*65536
    s_add_u32 s46, s46, s47
    v_and_b32 v12, 15, v1
    v_lshlrev_b32 v12, 3, v12                   ; 4n*2
    v_lshrrev_b32 v13, 4, v1
    v_lshl_add_u32 v12, v13, 13, v12            ; + 8Gb*1024
    """)
    for e in range(16):
        row = 32*(e>>3) + 4*((e>>1)&1) + 2*((e>>2)&1) + (e&1)
        k(f"s_add_u32 s47, s46, {(row & ~3)*1024}")
        k(f"buffer_load_ushort v{64+e}, v12, s[32:35], s47 offen offset:{(row&3)*1024}")
    k("K1_NOWL:")
    k(f"""
    s_cmp_lt_u32 s36, 4
    s_cbranch_scc1 K1_BULK
    s_and_b32 s44, s36, 3             ; a
    v_and_b32 v12, 15, v1
    s_lshr_b32 s45, s38, 1
    s_lshl_b32 s45, s45, 14           ; 16*(j>>1)*1024
    s_lshl_b32 s46, s44, 8            ; a*256
    s_add_u32 s45, s45, s46
    s_add_u32 s45, s45, s41
    v_lshrrev_b32 v13, 4, v1
    v_lshlrev_b32 v13, 4, v13
    v_lshl_add_u32 v12, v12, 10, v13
    s_lshl_b32 s46, s44, 12           ; a*4096
    s_add_u32 s47, s46, {WKV}
    s_mov_b32 m0, s47
    v_lshlrev_b32 v13, 4, v1
    """)
    for st in range(4):
        k(f"buffer_load_dwordx4 v13, s[24:27], s46 offen offset:{st*1024} lds")
        k(f"buffer_load_dwordx4 {vr(64+4*st,4)}, v12, s[16:19], s45 offen offset:{st*64}")
    k("K1_BULK:")
    for s in range(8):
        k(f"s_add_u32 m0, s43, {XS + s*8192}\ns_add_u32 s48, s41, {s*128}\nbuffer_load_dwordx4 v2, s[16:19], s48 offen lds")
        k(f"s_add_u32 m0, s43, {WSL + s*8192}\ns_add_u32 s48, s42, {s*65536}\nbuffer_load_dwordx4 v3, s[20:23], s48 offen lds")
    k(f"""
    s_and_b32 s49, s36, 1             ; th
    s_bfe_u32 s50, s36, 0x10001       ; hp
    s_lshr_b32 s51, s36, 2            ; kh
    v_and_b32 v12, 31, v1
    s_lshl_b32 s52, s49, 5
    v_add_u32 v12, s52, v12           ; t
    v_bfe_u32 v13, v12, 1, 3          ; f(t)
    v_lshrrev_b32 v14, 5, v1          ; h
    v_xor_b32 v13, v13, v14
    v_lshlrev_b32 v13, 4, v13
    s_lshl_b32 s52, s51, 13
    v_lshl_add_u32 v12, v12, 7, s52   ; t*128 + kh*8192
    v_add_u32 v4, v12, v13
    v_xor_b32 v15, 32, v13
    v_add_u32 v5, v12, v15
    v_xor_b32 v15, 64, v13
    v_add_u32 v6, v12, v15
    v_xor_b32 v15, 0x60, v13
    v_add_u32 v7, v12, v15
    v_bfe_u32 v12, v1, 2, 2           ; r
    v_lshl_add_u32 v13, v14, 3, v12   ; row = 8h + r
    v_lshrrev_b32 v12, 1, v12
    v_lshlrev_b32 v12, 2, v12         ; sw
    v_bfe_u32 v15, v1, 4, 1           ; nb
    v_xor_b32 v15, s51, v15
    v_lshlrev_b32 v15, 1, v15
    v_bfe_u32 v8, v1, 1, 1            ; c>>1
    v_add_u32 v15, v15, v8
    s_lshl_b32 s53, s50, 2
    v_add_u32 v15, s53, v15           ; chunk
    v_xor_b32 v15, v15, v12
    v_lshlrev_b32 v15, 4, v15
    v_lshl_add_u32 v8, v13, 7, v15
    v_and_b32 v15, 1, v1
    v_lshl_add_u32 v8, v15, 3, v8
    s_add_u32 s52, s52, {WSL}
    v_add_u32 v8, s52, v8
    v_mov_b32 v9, 0
    v_mov_b32 v10, 0
    v_mov_b32 v11, 0
    """)
    for i in range(16): k(f"v_mov_b32 v{16+i}, 0")
    k(f"""
    s_cmp_lt_u32 s36, 4
    s_cbranch_scc1 K1_ST0
    v_lshrrev_b32 v12, 4, v1          ; G
    v_bfe_u32 v13, v1, 2, 2           ; r
    v_lshl_add_u32 v12, v12, 3, v13   ; row = 8G + r
    v_and_b32 v13, 3, v1
    v_lshlrev_b32 v13, 3, v13
    v_lshl_add_u32 v12, v12, 5, v13
    v_add_u32 v12, s47, v12
    """)
    for i in range(8): k(f"v_mov_b32 v{96+i}, 0")
    k("s_waitcnt vmcnt(16)")
    for st in range(4):
        k(f"ds_read_b64_tr_b16 {vr(80+4*st,2)}, v12 offset:{st*1024}\nds_read_b64_tr_b16 {vr(82+4*st,2)}, v12 offset:{st*1024+128}")
    for i in range(16):
        k(f"v_dot2c_f32_bf16 v100, s40, v{64+i}\nv_dot2c_f32_bf16 v101, v{64+i}, v{64+i}")
    k("s_waitcnt lgkmcnt(0)\ns_bitcmp1_b32 s38, 0\ns_cbranch_scc1 K1_VM")
    for st in range(4): k(f"v_mfma_f32_16x16x32_bf16 v[96:99], {vr(80+4*st,4)}, {vr(64+4*st,4)}, v[96:99]")
    k("s_branch K1_KM\nK1_VM:")
    for st in range(4): k(f"v_mfma_f32_16x16x32_bf16 v[96:99], {vr(64+4*st,4)}, {vr(80+4*st,4)}, v[96:99]")
    k("K1_KM:")
    for i in range(16): k(f"v_dot2c_f32_bf16 v102, s40, v{80+i}")
    k(f"""
    s_lshl_b32 s46, s44, 11
    s_add_u32 s46, s46, {EX}
    v_lshl_add_u32 v12, v1, 5, s46
    s_nop 0
    ds_write_b128 v12, v[96:99]
    ds_write_b128 v12, v[100:103] offset:16
    s_waitcnt lgkmcnt(0)
    K1_ST0:
    """)
    def stage(st):
        for sp in range(4):
            k(f"ds_read_b128 {vr(32+4*sp,4)}, v{4+sp} offset:{st*16384}")
            k(f"ds_read_b64_tr_b16 {vr(48+4*sp,2)}, v8 offset:{st*16384+sp*2048}")
            k(f"ds_read_b64_tr_b16 {vr(50+4*sp,2)}, v8 offset:{st*16384+sp*2048+512}")
        for sp in range(4):
            k(f"s_waitcnt lgkmcnt({9-3*sp})")
            k(f"v_mfma_f32_32x32x16_bf16 v[16:31], {vr(48+4*sp,4)}, {vr(32+4*sp,4)}, v[16:31]")
            for i in range(4):
                k(f"v_dot2c_f32_bf16 v9, s40, v{32+4*sp+i}\nv_dot2c_f32_bf16 v10, v{32+4*sp+i}, v{32+4*sp+i}\nv_dot2c_f32_bf16 v11, s40, v{48+4*sp+i}")
    k("s_waitcnt vmcnt(12)\ns_barrier")
    k(f"""
    s_cmp_eq_u32 s36, 7
    s_cbranch_scc0 K1_NOFIN
    v_lshlrev_b32 v12, 5, v1
    v_add_u32 v12, {EX}, v12
    """)
    for a in range(3):
        k(f"ds_read_b128 {vr(64+8*a,4)}, v12 offset:{a*2048}\nds_read_b128 {vr(68+8*a,4)}, v12 offset:{a*2048+16}")
    k("s_waitcnt lgkmcnt(0)")
    for a in range(3):
        for i in range(7): k(f"v_add_f32 v{96+i}, v{96+i}, v{64+8*a+i}")
    for op in ('v_permlane16_swap_b32', 'v_permlane32_swap_b32'):
        k("v_mov_b32 v64, v100\nv_mov_b32 v65, v101\nv_mov_b32 v66, v102\ns_nop 0")
        k(f"{op} v100, v64\n{op} v101, v65\n{op} v102, v66")
        k("v_add_f32 v100, v100, v64\nv_add_f32 v101, v101, v65\nv_add_f32 v102, v102, v66")
    k(f"""
    v_mul_f32 v100, {f32(1/512)}, v100          ; mean
    v_mul_f32 v101, {f32(1/512)}, v101
    v_fma_f32 v101, -v100, v100, v101           ; var
    v_add_f32 v101, {f32(1e-5)}, v101
    v_rsq_f32 v101, v101
    v_and_b32 v12, 15, v1
    v_lshlrev_b32 v13, 2, v12
    v_add_u32 v13, {X2}, v13
    ds_write_b32 v13, v100
    ds_write_b32 v13, v101 offset:64
    ds_write_b32 v13, v102 offset:128
    v_lshrrev_b32 v14, 4, v1                    ; G
    v_lshlrev_b32 v13, 4, v14
    v_add_u32 v13, {X2}, v13
    s_waitcnt lgkmcnt(0)
    ds_read_b128 v[64:67], v13
    ds_read_b128 v[68:71], v13 offset:64
    ds_read_b128 v[72:75], v13 offset:128
    s_lshl_b32 s46, s37, 1
    s_lshr_b32 s47, s38, 2
    s_add_u32 s46, s46, s47
    s_lshl_b32 s46, s46, 11                     ; kt*2048
    s_bfe_u32 s47, s38, 0x10001                 ; b
    v_and_b32 v13, 1, v14
    v_lshrrev_b32 v14, 1, v14
    s_waitcnt lgkmcnt(0)
    s_bitcmp1_b32 s38, 0
    s_cbranch_scc1 K1_FV
    """)
    for r in range(4): k(f"v_fma_f32 v{96+r}, -v100, v{72+r}, v{96+r}")
    for r in range(4): k(f"v_mul_f32 v{96+r}, v{96+r}, v101")
    k(f"""
    s_lshl_b32 s47, s47, 8
    v_lshlrev_b32 v13, 9, v13
    v_lshl_add_u32 v13, v12, 4, v13
    v_lshl_add_u32 v13, v14, 3, v13
    s_branch K1_FS
    K1_FV:
    """)
    for r in range(4): k(f"v_fma_f32 v{96+r}, -v{64+r}, v102, v{96+r}")
    for r in range(4): k(f"v_mul_f32 v{96+r}, v{96+r}, v{68+r}")
    k(f"""
    s_lshl_b32 s47, s47, 9
    s_add_u32 s47, s47, 1024
    v_lshlrev_b32 v13, 3, v13
    v_lshl_add_u32 v13, v12, 4, v13
    v_lshl_add_u32 v13, v14, 8, v13
    K1_FS:
    s_add_u32 s46, s46, s47
    s_add_u32 s46, s46, {KVF}
    v_cvt_pk_bf16_f32 v96, v96, v97
    v_cvt_pk_bf16_f32 v97, v98, v99
    buffer_store_dwordx2 v[96:97], v13, s[28:31], s46 offen
    K1_NOFIN:
    s_cmp_eq_u32 s36, 3
    s_cbranch_scc0 K1_NOWO
    """)
    for i in range(8): k(f"v_lshl_or_b32 v{80+i}, v{65+2*i}, 16, v{64+2*i}")
    k(f"""
    s_lshl_b32 s46, s2, 11
    s_add_u32 s46, s46, {WOT}
    v_lshlrev_b32 v12, 4, v1
    buffer_store_dwordx4 v[80:83], v12, s[28:31], s46 offen
    buffer_store_dwordx4 v[84:87], v12, s[28:31], s46 offen offset:1024
    K1_NOWO:
    """)
    stage(0)
    for st in range(1, 4):
        k(f"s_waitcnt vmcnt({4*(3-st)})\ns_barrier")
        stage(st)
    k("s_nop 1\nv_mov_b32 v12, v9\nv_mov_b32 v13, v10\nv_mov_b32 v14, v11\ns_nop 0")
    k("v_permlane32_swap_b32 v9, v12\nv_permlane32_swap_b32 v10, v13\nv_permlane32_swap_b32 v11, v14")
    k("v_add_f32 v32, v9, v12\nv_add_f32 v33, v10, v13\nv_add_f32 v11, v11, v14")
    k(f"""
    s_lshl_b32 s46, s36, 11
    s_add_u32 s46, s46, {WKV}
    v_lshl_add_u32 v12, v1, 5, s46
    ds_write_b128 v12, v[24:27]
    ds_write_b128 v12, v[28:31] offset:16
    v_xor_b32 v12, 0x2000, v12
    v_and_b32 v13, 31, v1
    s_lshl_b32 s46, s36, 8
    s_add_u32 s46, s46, {STX}
    v_lshl_add_u32 v14, v13, 3, s46
    ds_write_b64 v14, v[32:33]
    s_xor_b32 s47, s36, 4
    s_lshl_b32 s47, s47, 8
    s_add_u32 s47, s47, {STX}
    v_lshl_add_u32 v14, v13, 3, s47
    s_lshl_b32 s46, s51, 4
    v_xor_b32 v13, s46, v13
    s_lshl_b32 s46, s36, 7
    s_add_u32 s46, s46, {CSX}
    v_lshl_add_u32 v13, v13, 2, s46
    ds_write_b32 v13, v11
    s_and_b32 s46, s36, 3
    s_lshl_b32 s46, s46, 7
    s_lshl_b32 s47, s51, 6
    s_add_u32 s46, s46, s47
    s_add_u32 s46, s46, {CSX}
    v_lshrrev_b32 v13, 5, v1
    v_lshl_add_u32 v13, v13, 4, s46
    s_waitcnt lgkmcnt(0)
    s_barrier
    ds_read_b64 v[34:35], v14
    ds_read_b128 v[40:43], v13
    ds_read_b128 v[44:47], v13 offset:32
    ds_read_b128 v[48:51], v13 offset:512
    ds_read_b128 v[52:55], v13 offset:544
    ds_read_b128 v[56:59], v12
    ds_read_b128 v[60:63], v12 offset:16
    s_waitcnt lgkmcnt(6)
    v_add_f32 v32, v32, v34
    v_add_f32 v33, v33, v35
    v_mul_f32 v32, {f32(1/512)}, v32
    v_mul_f32 v33, {f32(1/512)}, v33
    v_fma_f32 v33, -v32, v32, v33
    v_add_f32 v33, {f32(1e-5)}, v33
    v_rsq_f32 v33, v33
    s_waitcnt lgkmcnt(2)
    """)
    for i in range(8): k(f"v_add_f32 v{40+i}, v{40+i}, v{48+i}")
    k(f"v_mul_f32 v33, {f32(CSCALE)}, v33\ns_waitcnt lgkmcnt(0)")
    for i in range(8): k(f"v_add_f32 v{16+i}, v{16+i}, v{56+i}")
    for i in range(8): k(f"v_fma_f32 v{16+i}, -v32, v{40+i}, v{16+i}")
    for i in range(8): k(f"v_mul_f32 v{16+i}, v{16+i}, v33")
    for i in range(4): k(f"v_cvt_pk_bf16_f32 v{16+i}, v{16+2*i}, v{17+2*i}")
    k(f"""
    s_lshl_b32 s46, s37, 1
    s_add_u32 s46, s46, s49                     ; tt
    s_lshl_b32 s46, s46, 5
    s_lshl_b32 s47, s38, 2
    s_add_u32 s46, s46, s47
    s_lshl_b32 s47, s50, 1
    s_add_u32 s46, s46, s47
    s_add_u32 s46, s46, s51
    s_lshl_b32 s46, s46, 10
    s_add_u32 s46, s46, {QF}
    v_lshlrev_b32 v12, 4, v1
    buffer_store_dwordx4 v[16:19], v12, s[28:31], s46 offen
    K1_END:
    s_endpgm
    """)
    return k

TP = 2080
def k2(pos=(1,5,10), fillat=3, prio=None, twoacc=False, U=4, nods=False, nomf=False, zrows=False):
    k = Kern('attn_kernel', 256, 512, 72*TP, 176)
    O2 = 160 if twoacc else 80
    Q, KF, VL, VH, IDX, AK, AV, C, SA, SB, O, ST = 4, 8, 12, 16, 20, 21, 22, 32, 48, 64, 80, 96
    k("""
    s_cmp_ge_u32 s2, 256
    s_cbranch_scc1 K2_END
    s_load_dwordx2 s[14:15], s[0:1], 96
    """)
    ids(k)
    k(f"""
    s_and_b32 s49, s36, 1             ; th
    s_bfe_u32 s50, s36, 0x10001       ; hp
    s_lshr_b32 s51, s36, 2            ; kh
    s_lshl_b32 s52, s38, 2
    s_lshl_b32 s47, s50, 1
    s_add_u32 s52, s52, s47
    s_add_u32 s52, s52, s51           ; head
    s_lshl_b32 s53, s37, 1
    s_add_u32 s53, s53, s49           ; tt
    s_lshl_b32 s46, s53, 5
    s_add_u32 s46, s46, s52
    s_lshl_b32 s46, s46, 10
    s_add_u32 s46, s46, {QF}
    v_lshlrev_b32 v2, 4, v1           ; lane*16
    s_lshl_b32 s47, s36, 11
    v_add_u32 v3, s47, v2             ; w*2048 + lane*16
    s_waitcnt lgkmcnt(0)
    """)
    k.srd(28, 14, WS_SIZE)
    k(f"buffer_load_dwordx4 {vr(Q,4)}, v2, s[28:31], s46 offen")
    for i in range(8):
        k(f"s_mov_b32 s47, {KVF + i*16384}")
        k(f"buffer_load_dwordx4 {vr(ST+8*i,4)}, v3, s[28:31], s47 offen")
        k(f"buffer_load_dwordx4 {vr(ST+8*i+4,4)}, v3, s[28:31], s47 offen offset:1024")
    k(f"""
    s_mul_i32 s47, s36, {TP}
    v_add_u32 v24, s47, v2
    v_lshrrev_b32 v26, 5, v1          ; h
    v_and_b32 v27, 31, v1             ; d
    v_mul_u32_u24 v25, 528, v26
    v_lshl_add_u32 v25, v27, 4, v25
    s_add_u32 s48, s47, 1024
    v_add_u32 v25, s48, v25
    v_bfe_u32 v28, v1, 1, 3
    v_mul_u32_u24 v28, {8*TP}, v28
    v_and_b32 v29, 1, v1
    v_mul_u32_u24 v29, 528, v29
    s_add_u32 s48, s47, 1536
    v_add3_u32 v28, v28, v29, s48
    v_mov_b32 v{C}, 0x3f803f80
    v_mov_b32 v{C+1}, 0x3f803f80
    v_mov_b32 v{C+2}, 0x3f803f80
    v_mov_b32 v{C+3}, 0x3f803f80
    ds_write_b128 v28, {vr(C,4)}
    v_lshlrev_b32 v28, 8, v26
    v_lshl_add_u32 v28, v27, 4, v28
    v_mov_b32 v29, 512
    v_cmp_gt_u32 vcc, 16, v27
    v_mov_b32 v{IDX}, 0xdddddddd
    v_add_u32 v30, {4*8*TP}, v24
    v_cndmask_b32 v23, v29, v28, vcc
    v_add_u32 v23, 1024, v23
    """)
    if zrows: k("v_mov_b32 v29, 0x100000\nv_cmp_lt_u32 vcc, 16, v27\ns_nop 1\nv_cndmask_b32 v23, v23, v29, vcc")
    k(f"""
    v_add_u32 v31, {4*8*TP}, v25
    s_mov_b32 s54, 1
    s_mov_b32 s58, {fillat}
    s_mov_b32 s59, 99
    s_mov_b32 s55, 2
    s_mov_b32 s56, {f32(-OFF)}
    s_waitcnt vmcnt(12)
    """)
    for i in range(2):
        k(f"ds_write_b128 v24, {vr(ST+8*i,4)} offset:{i*8*TP}\nds_write_b128 v25, {vr(ST+8*i+4,4)} offset:{i*8*TP}")
    k(f"""
    s_waitcnt lgkmcnt(0)
    s_barrier
    """)
    if prio:
        k(f"s_cmp_eq_u32 s51, {prio[0]}\ns_cbranch_scc0 K2_PB\ns_setprio 2\ns_mov_b32 s59, {prio[1]}\ns_branch K2_PC\nK2_PB:\ns_setprio 1\nK2_PC:")
    k(f"""
    K2_RETRY:
    v_mov_b32 v{AK}, v2
    v_mov_b32 v28, 0xff800000
    s_mov_b32 s57, s55
    K2_MAX:
    ds_read_b128 {vr(KF,4)}, v{AK}
    v_add_u32 v{AK}, {TP}, v{AK}
    s_sub_u32 s57, s57, 1
    s_waitcnt lgkmcnt(0)
    v_mfma_f32_32x32x16_bf16 {vr(SA,16)}, {vr(KF,4)}, {vr(Q,4)}, 0
    s_nop 11
    """)
    for i in range(8): k(f"v_max3_f32 v28, v28, v{SA+2*i}, v{SA+2*i+1}")
    k(f"""
    s_cmp_lg_u32 s57, 0
    s_cbranch_scc1 K2_MAX
    v_mov_b32 v{AK}, v2
    v_mov_b32 v{AV}, v23
    ds_read_b128 {vr(KF,4)}, v{AK}
    ds_read_b128 {vr(VH,4)}, v{AV}
    """)
    allreduce_halves(k, 28, 29, 'v_max_f32')
    k(f"v_sub_f32 v{C}, s56, v28")
    for i in range(1, 16): k(f"v_mov_b32 v{C+i}, v{C}")
    for i in range(16): k(f"v_mov_b32 v{O+i}, 0")
    if twoacc:
        for i in range(16): k(f"v_mov_b32 v{O2+i}, 0")
    for i in range(8): k(f"v_mov_b32 v{SB+8+i}, 0")
    k(f"""
    s_waitcnt lgkmcnt(1)
    v_mfma_f32_32x32x16_bf16 {vr(SA,16)}, {vr(KF,4)}, {vr(Q,4)}, {vr(C,16)}
    ds_read_b128 {vr(KF,4)}, v{AK} offset:{TP}
    ds_read_b128 {vr(VL,4)}, v{AV}
    s_mov_b32 s57, 0
    s_nop 8
    .p2align 3
    K2_LOOP:
    """)
    def trio(mf, rd):
        if not nods: k("s_waitcnt lgkmcnt(2)")
        if not nomf: k(mf)
        if not nods: k(rd)
    for u in range(U):
        cur, oth = (SA, SB) if u % 2 == 0 else (SB, SA)
        for e in range(16):
            k(f"v_exp_f32 v{cur+e}, v{cur+e}")
            if e == pos[0]: trio(f"v_smfmac_f32_32x32x32_bf16 {vr(O2,16)}, {vr(VH,4)}, {vr(oth+8,8)}, v{IDX}", f"ds_read_b128 {vr(VH,4)}, v{AV} offset:{u*TP+528}")
            if e == pos[1]: trio(f"v_mfma_f32_32x32x16_bf16 {vr(oth,16)}, {vr(KF,4)}, {vr(Q,4)}, {vr(C,16)}", f"ds_read_b128 {vr(KF,4)}, v{AK} offset:{(u+2)*TP}")
            if e == pos[2]: trio(f"v_smfmac_f32_32x32x32_bf16 {vr(O,16)}, {vr(VL,4)}, {vr(cur,8)}, v{IDX}", f"ds_read_b128 {vr(VL,4)}, v{AV} offset:{(u+1)*TP}")
    k(f"""
    v_add_u32 v{AK}, {U*TP}, v{AK}
    v_add_u32 v{AV}, {U*TP}, v{AV}
    s_add_u32 s57, s57, 1
    s_cmp_eq_u32 s57, s58
    s_cbranch_scc1 K2_FILL
    K2_BACK:
    s_cmp_lt_u32 s57, {64//U}
    s_cbranch_scc1 K2_LOOP
    s_waitcnt lgkmcnt(0)
    v_smfmac_f32_32x32x32_bf16 {vr(O2,16)}, {vr(VH,4)}, {vr(SB+8,8)}, v{IDX}
    s_nop 11
    """)
    if twoacc:
        for i in range(9): k(f"v_add_f32 v{O+i}, v{O+i}, v{O2+i}")
    if zrows:
        k(f"v_mov_b32 v29, v{O+8}\ns_nop 1\nv_permlane32_swap_b32 v{O+8}, v29")
    k(f"""
    v_mul_f32 v28, {f32(256.0)}, v{O+8}
    v_rcp_f32 v29, v{O+8}
    """)
    for i in range(8): k(f"v_add_f32 v28, v28, abs(v{O+i})")
    for i in range(8): k(f"v_mul_f32 v{O+i}, v{O+i}, v29")
    k(f"""
    v_mov_b32 v29, 0x7f800000
    v_cmp_nlt_f32 vcc, v28, v29
    s_cmp_eq_u32 s55, 64
    s_cbranch_scc1 K2_OK
    s_cbranch_vccz K2_OK
    s_mov_b32 s55, 64
    s_mov_b32 s56, 0
    s_branch K2_RETRY
    K2_OK:
    """)
    for i in range(4): k(f"v_cvt_pk_bf16_f32 v{O+i}, v{O+2*i}, v{O+2*i+1}")
    k(f"""
    s_lshl_b32 s46, s53, 15           ; tt*32*1024
    s_lshl_b32 s47, s52, 5
    s_add_u32 s46, s46, s47
    s_add_u32 s46, s46, {OB}
    v_lshlrev_b32 v28, 10, v27
    v_lshl_add_u32 v28, v26, 4, v28
    buffer_store_dwordx4 {vr(O,4)}, v28, s[28:31], s46 offen
    K2_END:
    s_endpgm
    K2_FILL:
    s_cmp_eq_u32 s54, 0
    s_cbranch_scc0 K2_FILL2
    s_setprio 0
    s_branch K2_BACK
    K2_FILL2:
    s_mov_b32 s54, 0
    s_mov_b32 s58, s59
    s_waitcnt vmcnt(0)
    """)
    for i in range(2, 8):
        a, b, o = (24, 25, i*8*TP) if i < 4 else (30, 31, (i-4)*8*TP)
        k(f"ds_write_b128 v{a}, {vr(ST+8*i,4)} offset:{o}\nds_write_b128 v{b}, {vr(ST+8*i+4,4)} offset:{o}")
    k("s_waitcnt lgkmcnt(0)\ns_barrier\ns_branch K2_BACK")
    return k

def wave_reduce3(k, regs, sdst):
    steps = ['quad_perm:[1,0,3,2]', 'quad_perm:[2,3,0,1]', 'row_half_mirror', 'row_mirror', 'row_bcast:15 row_mask:0xa', 'row_bcast:31 row_mask:0xc']
    k("s_nop 1")
    for st in steps:
        for r in regs: k(f"v_add_f32_dpp v{r}, v{r}, v{r} {st}")
        if len(regs) < 3: k("s_nop 1")
    k("s_nop 0")
    for r, s in zip(regs, sdst): k(f"v_readlane_b32 s{s}, v{r}, 63")

def k3():
    k = Kern('oproj_kernel', 256, 512, 8*2064, 200)
    A, T, B = 32, 16, 64
    k("""
    s_cmp_ge_u32 s2, 256
    s_cbranch_scc1 K3_END
    s_load_dwordx2 s[4:5], s[0:1], 0
    s_load_dwordx2 s[6:7], s[0:1], 48
    s_load_dwordx2 s[8:9], s[0:1], 80
    s_load_dwordx2 s[14:15], s[0:1], 96
    """)
    ids(k)
    k(f"""
    s_lshl_b32 s40, s37, 6
    s_lshl_b32 s41, s38, 3
    s_add_u32 s40, s40, s41           ; tok0
    v_and_b32 v2, 7, v1               ; t
    v_bfe_u32 v3, v1, 3, 1            ; p
    v_lshrrev_b32 v4, 4, v1           ; Ga
    v_lshlrev_b32 v5, 10, v2
    v_lshl_add_u32 v5, v4, 5, v5
    v_lshl_add_u32 v5, v3, 4, v5      ; A voffset
    v_lshlrev_b32 v6, 4, v1           ; lane*16
    s_lshl_b32 s42, s40, 10
    s_add_u32 s43, s42, {OB}
    s_lshl_b32 s44, s36, 13
    s_add_u32 s44, s44, {WOT}         ; + w*4*2048
    s_lshl_b32 s45, s36, 10
    s_add_u32 s45, s45, s42           ; (tok0+w)*1024
    v_mov_b32 v7, 0x44444444
    v_mov_b32 v8, 0xeeeeeeee
    v_cmp_eq_u32 vcc, 1, v3
    s_waitcnt lgkmcnt(0)
    """)
    k.srd(16, 4, 2097152); k.srd(20, 6, 1024); k.srd(24, 8, 2097152); k.srd(28, 14, WS_SIZE)
    k("v_cndmask_b32 v7, v7, v8, vcc")
    for s in range(8): k(f"buffer_load_dwordx4 {vr(A+4*s,4)}, v5, s[28:31], s43 offen offset:{s*128}")
    k("buffer_load_dwordx4 v[8:11], v6, s[16:19], s45 offen\nbuffer_load_dwordx4 v[12:15], v6, s[20:23], 0 offen")
    def loadB(s):
        base = B + (s & 3) * 32
        k(f"s_add_u32 s46, s44, {s*65536}\ns_add_u32 s47, s46, 4096")
        for i in range(4):
            so = 's46' if i < 2 else 's47'
            k(f"buffer_load_dwordx4 {vr(base+8*i,4)}, v6, s[28:31], {so} offen offset:{(i&1)*2048}")
            k(f"buffer_load_dwordx4 {vr(base+8*i+4,4)}, v6, s[28:31], {so} offen offset:{(i&1)*2048+1024}")
    for s in range(4): loadB(s)
    for i in range(16): k(f"v_mov_b32 v{T+i}, 0")
    for s in range(8):
        k(f"s_waitcnt vmcnt({24 if s < 5 else 8*(7-s)})")
        base = B + (s & 3) * 32
        for i in range(4): k(f"v_smfmac_f32_16x16x64_bf16 {vr(T+4*i,4)}, {vr(A+4*s,4)}, {vr(base+8*i,8)}, v7")
        if s + 4 < 8: loadB(s + 4)
    k("s_nop 7")
    for r in range(4): k(f"v_permlane32_swap_b32 v{T+r}, v{T+8+r}\nv_permlane32_swap_b32 v{T+4+r}, v{T+12+r}")
    for r in range(4): k(f"v_add_f32 v{A+2*r}, v{T+r}, v{T+8+r}\nv_add_f32 v{A+2*r+1}, v{T+4+r}, v{T+12+r}")
    k(f"""
    v_and_b32 v2, 15, v1
    v_lshlrev_b32 v2, 4, v2           ; 4n*4
    v_lshrrev_b32 v3, 5, v1
    v_lshl_add_u32 v2, v3, 3, v2      ; + 2*(G>>1)*4
    v_bfe_u32 v3, v1, 4, 1
    v_mul_u32_u24 v3, {4*2064}, v3
    s_lshl_b32 s46, s36, 8
    v_add3_u32 v2, v2, v3, s46
    """)
    for r in range(4): k(f"ds_write_b64 v2, {vr(A+2*r,2)} offset:{r*2064}")
    k(f"""
    s_mul_i32 s46, s36, 2064
    v_lshl_add_u32 v2, v1, 5, s46
    """)
    for i in range(4):
        k(f"v_lshlrev_b32 v{48+2*i}, 16, v{8+i}\nv_and_b32 v{49+2*i}, 0xffff0000, v{8+i}")
        k(f"v_lshlrev_b32 v{56+2*i}, 16, v{12+i}\nv_and_b32 v{57+2*i}, 0xffff0000, v{12+i}")
    k("v_add_f32 v19, v56, v57")
    for i in range(2, 8): k(f"v_add_f32 v19, v19, v{56+i}")
    k("s_waitcnt lgkmcnt(0)\ns_barrier\nds_read_b128 v[40:43], v2\nds_read_b128 v[44:47], v2 offset:16\ns_waitcnt lgkmcnt(0)")
    for i in range(8): k(f"v_add_f32 v{40+i}, v{40+i}, v{48+i}")
    k("v_add_f32 v16, v40, v41\nv_mul_f32 v17, v40, v40\nv_mul_f32 v18, v40, v56\nv_fmac_f32 v17, v41, v41\nv_fmac_f32 v18, v41, v57")
    for i in range(2, 8): k(f"v_add_f32 v16, v16, v{40+i}\nv_fmac_f32 v17, v{40+i}, v{40+i}\nv_fmac_f32 v18, v{40+i}, v{56+i}")
    wave_reduce3(k, [16, 17, 18, 19], [50, 51, 52, 53])
    k(f"""
    v_mov_b32 v20, {f32(1/512)}
    v_mul_f32 v16, s50, v20           ; mean
    v_mul_f32 v17, s51, v20
    v_fma_f32 v17, -v16, v16, v17
    v_add_f32 v17, {f32(1e-5)}, v17
    v_rsq_f32 v17, v17                ; rstd
    v_mov_b32 v18, s52
    v_fma_f32 v18, -v16, s53, v18
    v_mul_f32 v18, v18, v17           ; r
    v_mul_f32 v19, v16, v17           ; mean*rstd
    """)
    for i in range(8): k(f"v_fma_f32 v{48+i}, v{40+i}, v17, -v19")
    for i in range(8): k(f"v_add_f32 v{40+i}, v{40+i}, v{48+i}")
    for i in range(4): k(f"v_cvt_pk_bf16_f32 v{48+i}, v{48+2*i}, v{49+2*i}\nv_cvt_pk_bf16_f32 v{40+i}, v{40+2*i}, v{41+2*i}")
    k(f"""
    buffer_store_dwordx4 v[40:43], v6, s[24:27], s45 offen
    s_add_u32 s46, s45, {HN}
    buffer_store_dwordx4 v[48:51], v6, s[28:31], s46 offen
    v_ashrrev_i32 v19, 31, v18
    v_or_b32 v19, 0x80000000, v19
    v_xor_b32 v18, v18, v19
    v_and_b32 v18, 0xfffff800, v18
    s_add_u32 s46, s40, s36
    s_sub_u32 s47, 2047, s46
    v_or_b32 v18, s47, v18
    s_lshl_b32 s46, s46, 2
    s_add_u32 s46, s46, {KEY}
    v_mov_b32 v19, 0
    s_mov_b64 exec, 1
    buffer_store_dword v18, v19, s[28:31], s46 offen
    K3_END:
    s_endpgm
    """)
    return k

def top2(k, kb, n, m1, m2, t1, t2, s1, s2):
    k(f"v_max_u32 v{m1}, v{kb}, v{kb+1}\nv_min_u32 v{m2}, v{kb}, v{kb+1}")
    for i in range(2, n):
        k(f"v_med3_u32 v{m2}, v{m1}, v{m2}, v{kb+i}\nv_max_u32 v{m1}, v{m1}, v{kb+i}")
    for st in ['quad_perm:[1,0,3,2]', 'quad_perm:[2,3,0,1]', 'row_half_mirror', 'row_mirror']:
        k(f"s_nop 1\nv_mov_b32_dpp v{t1}, v{m1} {st}\nv_mov_b32_dpp v{t2}, v{m2} {st}")
        k(f"v_max_u32 v{m2}, v{m2}, v{t2}\nv_med3_u32 v{m2}, v{m1}, v{m2}, v{t1}\nv_max_u32 v{m1}, v{m1}, v{t1}")
    for op in ('v_permlane16_swap_b32', 'v_permlane32_swap_b32'):
        k(f"v_mov_b32 v{t1}, v{m1}\nv_mov_b32 v{t2}, v{m2}\ns_nop 1\n{op} v{m1}, v{t1}\n{op} v{m2}, v{t2}")
        k(f"v_max_u32 v{m2}, v{m2}, v{t2}\nv_med3_u32 v{m2}, v{m1}, v{m2}, v{t1}\nv_max_u32 v{m1}, v{m1}, v{t1}")
    k(f"s_nop 0\nv_readfirstlane_b32 s{s1}, v{m1}\nv_readfirstlane_b32 s{s2}, v{m2}")

def k4():
    k = Kern('ffnup_kernel', 224, 64, 16384, 176)
    Bf, Af, KB = 16, 80, 144
    k("""
    s_cmp_ge_u32 s2, 224
    s_cbranch_scc1 K4_END
    s_load_dwordx4 s[4:7], s[0:1], 56
    s_load_dwordx2 s[14:15], s[0:1], 96
    s_and_b32 s40, s2, 7
    s_mul_i32 s40, s40, 28
    s_lshr_b32 s41, s2, 3
    s_add_u32 s40, s40, s41           ; cb
    s_lshl_b32 s41, s40, 4
    v_mul_u32_u24 v2, 3584, v0
    v_lshlrev_b32 v3, 4, v0
    s_waitcnt lgkmcnt(0)
    """)
    k.srd(16, 4, 512*3584); k.srd(20, 6, 512*3584); k.srd(28, 14, WS_SIZE)
    k(f"s_mov_b32 s42, {KEY}\ns_mov_b32 s43, {KEY+4096}")
    for i in range(8): k(f"buffer_load_dwordx4 {vr(KB+4*i,4)}, v3, s[28:31], {'s42' if i < 4 else 's43'} offen offset:{(i&3)*1024}")
    for i in range(8):
        k(f"s_mov_b32 m0, {i*1024}\ns_add_u32 s42, s41, {i*64*3584}\nbuffer_load_dwordx4 v2, s[16:19], s42 offen lds")
        k(f"s_mov_b32 m0, {8192+i*1024}\ns_nop 0\nbuffer_load_dwordx4 v2, s[20:23], s42 offen lds")
    k("s_waitcnt vmcnt(16)")
    top2(k, KB, 32, 4, 5, 6, 7, 44, 45)
    k(f"""
    s_andn2_b32 s46, 0x7ff, s44       ; token1
    s_andn2_b32 s47, 0x7ff, s45       ; token2
    s_lshl_b32 s46, s46, 10
    s_lshl_b32 s47, s47, 10
    v_and_b32 v4, 1, v0
    v_mov_b32 v5, s46
    v_mov_b32 v6, s47
    v_cmp_eq_u32 vcc, 1, v4
    v_lshrrev_b32 v7, 4, v0           ; G
    s_mov_b32 s48, {HN}
    v_cndmask_b32 v5, v5, v6, vcc
    v_lshl_add_u32 v5, v7, 4, v5
    """)
    for s in range(16): k(f"buffer_load_dwordx4 {vr(Af+4*s,4)}, v5, s[28:31], s48 offen offset:{s*64}")
    k(f"""
    v_bfe_u32 v4, v0, 2, 2            ; r
    v_lshl_add_u32 v4, v7, 3, v4      ; row = 8G + r
    v_lshlrev_b32 v4, 4, v4
    v_and_b32 v6, 1, v0
    v_lshl_add_u32 v4, v6, 3, v4
    v_bfe_u32 v6, v0, 1, 1
    v_lshl_add_u32 v4, v6, 13, v4
    v_mov_b32 v8, 0
    v_mov_b32 v9, 0
    v_mov_b32 v10, 0
    v_mov_b32 v11, 0
    s_waitcnt vmcnt(16)
    """)
    for s in range(16):
        k(f"ds_read_b64_tr_b16 {vr(Bf+4*s,2)}, v4 offset:{s*512}\nds_read_b64_tr_b16 {vr(Bf+4*s+2,2)}, v4 offset:{s*512+64}")
        if s % 4 == 3: k("s_waitcnt lgkmcnt(0)")
    for s in range(16):
        k(f"s_waitcnt vmcnt({15-s})\nv_mfma_f32_16x16x32_bf16 v[8:11], {vr(Af+4*s,4)}, {vr(Bf+4*s,4)}, v[8:11]")
    k(f"""
    s_nop 7
    v_mul_f32 v12, {f32(-math.log2(math.e))}, v8
    v_mul_f32 v13, {f32(-math.log2(math.e))}, v9
    v_exp_f32 v12, v12
    v_exp_f32 v13, v13
    v_mov_b32_dpp v14, v8 row_ror:8
    v_mov_b32_dpp v15, v9 row_ror:8
    v_add_f32 v12, 1.0, v12
    v_add_f32 v13, 1.0, v13
    v_rcp_f32 v12, v12
    v_rcp_f32 v13, v13
    v_mul_f32 v8, v8, v14
    v_mul_f32 v9, v9, v15
    v_mul_f32 v8, v8, v12
    v_mul_f32 v9, v9, v13
    v_cvt_pk_bf16_f32 v8, v8, v9
    v_lshlrev_b32 v4, 1, v0
    s_add_u32 s42, s41, {ACT}
    v_lshrrev_b32 v9, 16, v8
    s_mov_b64 exec, 0xff
    buffer_store_short v8, v4, s[28:31], s42 offen
    buffer_store_short v9, v4, s[28:31], s42 offen offset:3584
    s_cmp_lg_u32 s2, 0
    s_cbranch_scc1 K4_END
    v_mov_b32 v10, s44
    v_mov_b32 v11, s45
    s_mov_b32 s42, {TOP}
    s_mov_b64 exec, 1
    buffer_store_dwordx2 v[10:11], v4, s[28:31], s42 offen
    K4_END:
    s_endpgm
    """)
    return k

def k5():
    k = Kern('ffndown_kernel', 32, 512, 57344 + 1024, 80)
    Bf, Af = 16, 48; PX = 57344
    k("""
    s_cmp_ge_u32 s2, 32
    s_cbranch_scc1 K5_END
    s_load_dwordx4 s[4:7], s[0:1], 72
    s_load_dwordx2 s[14:15], s[0:1], 96
    v_lshrrev_b32 v1, 6, v0
    s_nop 0
    v_readfirstlane_b32 s36, v1
    v_and_b32 v1, 63, v0
    v_lshrrev_b32 v2, 1, v1
    v_lshlrev_b32 v2, 10, v2
    v_and_b32 v3, 1, v1
    v_lshl_add_u32 v2, v3, 4, v2
    s_mul_i32 s40, s36, 224*1024
    s_lshl_b32 s41, s2, 5
    s_add_u32 s40, s40, s41
    s_mul_i32 s42, s36, 7168
    v_mul_u32_u24 v5, 3584, v3
    v_lshrrev_b32 v7, 4, v1           ; G
    v_lshl_add_u32 v5, v7, 4, v5
    s_mul_i32 s43, s36, 448
    s_waitcnt lgkmcnt(0)
    """)
    k.srd(16, 4, 1792*1024); k.srd(24, 6, 2097152); k.srd(28, 14, WS_SIZE)
    k(f"s_add_u32 s43, s43, {ACT}\ns_mov_b32 s44, {TOP}\nv_mov_b32 v6, 0\nbuffer_load_dwordx2 v[12:13], v6, s[28:31], s44 offen")
    for s in range(7):
        k(f"s_add_u32 m0, s42, {s*1024}\ns_add_u32 s45, s40, {s*32*1024}\nbuffer_load_dwordx4 v2, s[16:19], s45 offen lds")
    for s in range(7): k(f"buffer_load_dwordx4 {vr(Af+4*s,4)}, v5, s[28:31], s43 offen offset:{s*64}")
    k(f"""
    v_bfe_u32 v4, v1, 2, 2
    v_lshl_add_u32 v4, v7, 3, v4
    v_lshlrev_b32 v4, 5, v4
    v_and_b32 v6, 3, v1
    v_lshl_add_u32 v4, v6, 3, v4
    v_add_u32 v4, s42, v4
    v_mov_b32 v8, 0
    v_mov_b32 v9, 0
    v_mov_b32 v10, 0
    v_mov_b32 v11, 0
    s_waitcnt vmcnt(14)
    v_bfe_u32 v6, v1, 4, 1
    v_cmp_eq_u32 vcc, 1, v6
    s_nop 1
    v_cndmask_b32 v12, v12, v13, vcc  ; key
    v_not_b32 v13, v12
    v_and_b32 v13, 0x7ff, v13         ; token
    v_and_b32 v14, 15, v1
    v_lshlrev_b32 v14, 1, v14
    v_lshl_add_u32 v13, v13, 10, v14
    buffer_load_ushort v14, v13, s[24:27], s41 offen
    s_waitcnt vmcnt(8)
    """)
    for s in range(7):
        k(f"ds_read_b64_tr_b16 {vr(Bf+4*s,2)}, v4 offset:{s*1024}\nds_read_b64_tr_b16 {vr(Bf+4*s+2,2)}, v4 offset:{s*1024+128}")
    k("s_waitcnt lgkmcnt(0) vmcnt(1)")
    for s in range(7): k(f"v_mfma_f32_16x16x32_bf16 v[8:11], {vr(Af+4*s,4)}, {vr(Bf+4*s,4)}, v[8:11]")
    k(f"""
    s_lshl_b32 s45, s36, 7
    s_add_u32 s45, s45, {PX}
    v_and_b32 v4, 15, v1
    v_lshl_add_u32 v4, v4, 2, s45
    v_and_b32 v5, 31, v1
    v_lshlrev_b32 v5, 2, v5
    v_add_u32 v5, {PX}, v5
    s_nop 3
    ds_write_b32 v4, v8
    ds_write_b32 v4, v9 offset:64
    s_waitcnt lgkmcnt(0)
    s_barrier
    s_cmp_lg_u32 s36, 0
    s_cbranch_scc1 K5_END
    """)
    for w in range(8): k(f"ds_read_b32 v{16+w}, v5 offset:{w*128}")
    k(f"""
    v_not_b32 v15, v12
    v_ashrrev_i32 v15, 31, v15
    v_or_b32 v15, 0x80000000, v15
    v_xor_b32 v15, v15, v12
    v_mul_f32 v15, {f32(-math.log2(math.e))}, v15
    v_exp_f32 v15, v15
    s_nop 0
    v_add_f32 v15, 1.0, v15
    v_rcp_f32 v15, v15
    s_waitcnt lgkmcnt(0) vmcnt(0)
    """)
    for w in range(1, 8): k(f"v_add_f32 v16, v16, v{16+w}")
    k(f"""
    v_lshlrev_b32 v14, 16, v14
    v_fmac_f32 v14, v16, v15
    v_cvt_pk_bf16_f32 v14, v14, v14
    s_mov_b64 exec, 0xffffffff
    buffer_store_short v14, v13, s[24:27], s41 offen
    K5_END:
    s_endpgm
    """)
    return k

def build(kerns, path, launches=None):
    launches = launches or kerns
    s = ''.join(f"; @launch kernel={k.name} grid=({k.grid},1,1) block=({k.block},1,1) lds={k.lds}\n" for k in launches)
    s += '.amdgcn_target "amdgcn-amd-amdhsa--gfx950"\n.text\n'
    s += ''.join(k.text() for k in kerns)
    s += '.section .rodata,"a"\n'
    s += ''.join('.p2align 6\n' + k.desc() for k in kerns)
    open(path, 'w').write(s)
    import hz
    print('hazards:', hz.check(s))
if __name__ == '__main__':
    build([k1(), k2(), k3(), k4(), k5()], sys.argv[1] if len(sys.argv) > 1 else 'v1.s')
```

```python
import re, sys
REG = re.compile(r'^(-|abs\(|\|)*([vas])(\d+|\[(\d+):(\d+)\])\)?\|?$')
def regs(tok):
    tok = tok.strip()
    if tok in ('vcc', 'vcc_lo', 'vcc_hi'): return {('s', 'vcc')}
    if tok in ('exec', 'exec_lo', 'exec_hi'): return {('s', 'exec')}
    if tok == 'm0': return {('s', 'm0')}
    m = REG.match(tok)
    if not m: return set()
    k = m.group(2)
    if m.group(4) is not None: return {(k, i) for i in range(int(m.group(4)), int(m.group(5)) + 1)}
    return {(k, int(m.group(3)))}
TRANS = ('v_exp_', 'v_log_', 'v_rcp_', 'v_rsq_', 'v_sqrt_', 'v_sin_', 'v_cos_')
class I:
    def __init__(s, text, ln):
        s.text = text; s.ln = ln
        p = text.split(None, 1); s.op = p[0]
        rest = p[1] if len(p) > 1 else ''
        ops = [o.strip() for o in re.split(r',(?![^\[]*\])', rest)] if rest else []
        if ops:
            last = ops[-1].split(); ops[-1] = last[0] if last else ''; s.mods = ' '.join(last[1:])
        else: s.mods = ''
        s.ops = ops
        op = s.op
        s.mf = op.startswith('v_mfma') or op.startswith('v_smfmac')
        s.valu = op.startswith('v_') and not s.mf
        s.salu = op.startswith('s_')
        s.ds = op.startswith('ds_')
        s.vmem = op.startswith(('buffer_', 'global_', 'flat_'))
        s.trans = op.startswith(TRANS)
        s.dot = op.startswith('v_dot')
        s.dpp = '_dpp' in op or any(x in s.mods for x in ('row_', 'quad_perm', 'wave_'))
        s.w = set(); s.r = set(); s.A = s.B = s.C = set(); s.sdata = set()
        R = [regs(o) for o in ops]
        if s.mf:
            s.w = R[0]; s.A = R[1]; s.B = R[2]
            if op.startswith('v_smfmac'): s.C = R[0]; s.B = R[2] | R[3]
            else: s.C = R[3]
            s.r = s.A | s.B | s.C
            s.passes = 8 if '32x32' in op else 4
        elif s.valu:
            s.w = set(R[0]); srcs = R[1:]
            if op.startswith(('v_add_co', 'v_addc_co', 'v_sub_co', 'v_subb_co')): s.w |= R[1]; srcs = R[2:]
            for x in srcs: s.r |= x
            if op.startswith(('v_fmac', 'v_dot2c', 'v_pk_fmac', 'v_writelane')) or 'UNUSED_PRESERVE' in s.mods or s.dpp: s.r |= R[0]
            if 'permlane' in op and 'swap' in op: s.w |= R[1]; s.r |= R[0]
            if op.startswith('v_cndmask') and len(ops) == 3: s.r |= {('s', 'vcc')}
            if op.startswith('v_cmpx'): s.w |= {('s', 'exec')}
        elif s.ds:
            if op.startswith(('ds_read', 'ds_bpermute', 'ds_permute', 'ds_swizzle')) or '_rtn' in op:
                s.w = R[0]
                for x in R[1:]: s.r |= x
            else:
                for x in R: s.r |= x
        elif s.vmem:
            lds = ' lds' in (' ' + s.mods) or '_lds_' in op
            ret = ('load' in op and not lds) or ('atomic' in op and 'sc0' in s.mods)
            if op in ('buffer_inv', 'buffer_wbl2'): pass
            elif ret:
                s.w = R[0]
                for x in R[1:]: s.r |= x
                if 'atomic' in op and op.startswith('buffer'): s.r |= R[0]
            else:
                for x in R: s.r |= x
                if lds: s.r |= {('s', 'm0')}
                if 'store' in op and ('x3' in op or 'x4' in op):
                    s.sdata = R[0] if op.startswith('buffer') else R[1]
            s.lds = lds
        elif s.salu:
            if op.startswith(('s_cmp', 's_cbranch', 's_branch', 's_waitcnt', 's_nop', 's_barrier', 's_endpgm', 's_setprio', 's_sleep', 's_bitcmp')):
                for x in R: s.r |= x
            elif R:
                s.w = set(R[0])
                for x in R[1:]: s.r |= x
                if 'saveexec' in op: s.w |= {('s', 'exec')}
    def ws(s):
        if s.op == 's_nop': return int(s.ops[0], 0) + 1
        return 1
def vonly(x): return {r for r in x if r[0] in 'va'}
def sonly(x): return {r for r in x if r[0] == 's'}
def need(p, c):
    n = 0
    if p.valu:
        wv = vonly(p.w); wsg = sonly(p.w)
        if c.mf and wv & c.r: n = max(n, 3 if p.dot else 2)
        if c.valu and c.dpp and wv & c.r: n = max(n, 2)
        if c.valu and 'permlane' in c.op and wv & c.r: n = max(n, 2)
        if c.op.startswith(('v_readlane', 'v_readfirstlane')) and wv & c.r: n = max(n, 1)
        if p.trans and c.valu and not c.trans and wv & c.r: n = max(n, 1)
        if p.trans and (c.ds or c.vmem) and wv & c.r: n = max(n, 1)
        if ('sdwa' in p.op or 'op_sel' in p.mods) and c.valu and wv & (c.r | c.w): n = max(n, 1)
        if p.dot and wv & (c.r | c.w) and not (c.op == p.op and not (wv & (c.r - c.w)) ): n = max(n, 3)
        if wsg:
            if c.vmem and wsg & c.r: n = max(n, 5)
            if c.valu and wsg & c.r: n = max(n, 4 if c.op.startswith(('v_readlane', 'v_writelane')) else 2)
            if ('s', 'exec') in wsg:
                if c.mf or c.op.startswith(('v_readlane', 'v_readfirstlane', 'v_writelane')) or 'permlane' in c.op: n = max(n, 4)
                if c.dpp: n = max(n, 5)
    if p.mf:
        big = p.passes == 8
        if c.mf:
            if p.w & (c.A | c.B): n = max(n, 12 if big else 8)
            if p.w & c.C and not (p.w == c.C and c.passes == p.passes): n = max(n, 10 if big else 6)
            if p.w & c.w and not (p.w == c.w and c.passes == p.passes): n = max(n, 10 if big else 6)
        elif (c.valu or c.ds or c.vmem) and p.w & (c.r | c.w): n = max(n, 12 if big else 8)
        if c.valu and p.C & c.w: n = max(n, 7 if big else 3)
    if p.salu and ('s', 'm0') in p.w and c.vmem and getattr(c, 'lds', False): n = max(n, 1)
    if p.vmem and p.sdata and p.sdata & c.w: n = max(n, 2 if c.valu else 1)
    return n
def check(text):
    ins = []; labels = {}
    for ln, line in enumerate(text.split('\n'), 1):
        t = line.split(';')[0].strip()
        if not t or t.startswith('.'): continue
        if t.endswith(':'): labels[t[:-1]] = len(ins); continue
        ins.append(I(t, ln))
    preds = [[] for _ in ins]
    for i, x in enumerate(ins):
        if x.op not in ('s_branch', 's_endpgm') and i + 1 < len(ins): preds[i + 1].append(i)
        if x.op.startswith(('s_branch', 's_cbranch')):
            t = labels[x.ops[0]]
            if t < len(ins): preds[t].append(i)
    bad = 0
    for ci, c in enumerate(ins):
        stack = [(p, 0) for p in preds[ci]]; seen = {}
        while stack:
            pi, d = stack.pop()
            if seen.get(pi, 99) <= d: continue
            seen[pi] = d
            p = ins[pi]
            n = need(p, c)
            if n > d:
                print(f'HAZARD line {p.ln} [{p.text}] -> line {c.ln} [{c.text}] need {n} have {d}'); bad += 1
            d2 = d + p.ws()
            if d2 < 12:
                for q in preds[pi]: stack.append((q, d2))
    return bad
if __name__ == '__main__':
    n = check(open(sys.argv[1]).read()); print('hazards:', n)
```

```python
import re
STAMP = 0x800000
SB = 80; NS = 22
def instrument(k, kidx, cyc=False):
    out = []
    ins = 's_memtime' if cyc else 's_memrealtime'
    def stamp(slot):
        return [f"    {ins} s[76:77]", "    s_waitcnt lgkmcnt(0)", f"    s_mov_b32 s{SB+slot}, s76"]
    out += [f"    s_mov_b32 s{SB+i}, 0" for i in range(NS)]
    out += ["    s_mov_b32 s78, s2", "    v_readfirstlane_b32 s79, v0"] + stamp(0)
    n = 0
    for l in k.L:
        m = re.match(r'\s*; STAMP (\d+)', l)
        if m: out += stamp(int(m.group(1))); continue
        if l.strip() == 's_endpgm':
            n += 1
            out += ["    s_waitcnt vmcnt(0)"] + stamp(NS - 1)
            out += ["    s_cmp_ge_u32 s78, 256", f"    s_cbranch_scc1 SE_{kidx}_{n}", "    s_load_dwordx2 s[74:75], s[0:1], 96",
                    "    s_mov_b64 exec, 1", f"    s_lshl_b32 s78, s78, 10", "    s_lshl_b32 s79, s79, 1", "    s_add_u32 s78, s78, s79", f"    s_add_u32 s78, s78, {STAMP + kidx*262144}", "    v_mov_b32 v0, s78", "    s_waitcnt lgkmcnt(0)"]
            for i in range(NS): out += [f"    v_mov_b32 v1, s{SB+i}", f"    global_store_dword v0, v1, s[74:75] offset:{4*i}"]
            out += [f"SE_{kidx}_{n}:", "    s_endpgm"]
        else: out.append(l)
    k.L = out; k.sgpr = 102
    return k
def addafter(k, pat, slot, nth=0):
    idx = [i for i, l in enumerate(k.L) if pat in l][nth]
    k.L.insert(idx + 1, f'    ; STAMP {slot}')
```

```python
import sys, struct, math
from gen1 import Kern, vr, f32, allreduce_halves, wave_reduce3, top2, NAME
KVF = 0; WOT = 0x20000; OB = WOT + 0x80000; HN = OB + 0x200000; BASE = HN + 0x200000
KEY2 = BASE + 0x200000; ACT = KEY2 + 0x1000; CNTB = ACT + 0x2000; WS_SIZE = CNTB + 0x1000
CSCALE = 0.25 * math.log2(math.e)
OFF = 96.0
TP = 2080
SPIN = 20000
LOG2E = math.log2(math.e)

def fused(prio=11, stamps=False, late_split=12, codepf=True):
    k = Kern(NAME + '_kernel', 256, 512, 163840, 256, sgpr=74)
    def ST(n):
        if stamps: k.L.append(f'    ; STAMP {n}')
    XS, WSL, EX = 0, 65536, 131072
    X2 = EX + 12288
    QX = 141440; STX = QX + 16384; CSX = STX + 1024
    FW = 141440
    MISC = 159872
    k(f"""
    s_cmp_ge_u32 s2, 256
    s_cbranch_scc1 L_END
    s_load_dwordx8 s[4:11], s[0:1], 0
    s_load_dwordx2 s[72:73], s[0:1], 96
    s_load_dwordx2 s[12:13], s[0:1], 32
    s_load_dwordx8 s[60:67], s[0:1], 48
    s_load_dwordx4 s[68:71], s[0:1], 80
    v_lshrrev_b32 v1, 6, v0
    s_and_b32 s37, s2, 7
    v_readfirstlane_b32 s36, v1
    s_lshl_b32 s37, s37, 2
    s_bfe_u32 s39, s2, 0x20003
    s_add_u32 s37, s37, s39           ; g
    s_lshr_b32 s38, s2, 5             ; j
    v_and_b32 v1, 63, v0              ; lane
    v_lshlrev_b32 v2, 4, v1           ; lane*16
    s_mov_b32 s40, 0x3f803f80
    s_lshl_b32 s41, s37, 16           ; g*65536
    s_and_b32 s49, s36, 1             ; th
    s_bfe_u32 s50, s36, 0x10001       ; hp
    s_lshr_b32 s51, s36, 2            ; kh
    s_lshl_b32 s52, s50, 1
    s_add_u32 s52, s52, s51
    s_lshl_b32 s53, s37, 3
    s_add_u32 s53, s53, s38
    s_lshl_b32 s54, s53, 3
    s_add_u32 s54, s54, s36
    s_lshl_b32 s55, s54, 10           ; token*1024
    s_lshl_b32 s56, s49, 15
    s_add_u32 s56, s56, s41
    s_lshl_b32 s39, s38, 10
    s_add_u32 s56, s56, s39
    s_lshl_b32 s39, s52, 8
    s_add_u32 s56, s56, s39
    s_add_u32 s56, s56, {OB}
    v_bfe_u32 v12, v1, 3, 2
    v_lshlrev_b32 v3, 13, v12
    v_lshrrev_b32 v12, 5, v1
    v_lshl_add_u32 v3, v12, 7, v3
    v_and_b32 v12, 7, v1
    v_lshl_add_u32 v3, v12, 4, v3
    v_mov_b32 v24, -1
    v_mov_b32 v25, -1
    v_mov_b32 v26, -1
    v_mov_b32 v27, -1
    s_cmp_ge_u32 s36, 4
    s_cbranch_scc1 L_HELP
    """)
    def sentinels():
        k(f"""
        buffer_store_dwordx4 v[24:27], v3, s[28:31], s56 offen sc1
        s_add_u32 s39, s55, {HN}
        buffer_store_dwordx4 v[24:27], v2, s[28:31], s39 offen sc1
        s_add_u32 s39, s55, {BASE}
        buffer_store_dwordx4 v[24:27], v2, s[28:31], s39 offen sc1
        """)
    def dma_stage(st):
        for s in (2*st, 2*st+1):
            k(f"s_add_u32 m0, s43, {XS + s*8192}\ns_add_u32 s48, s41, {s*128}\nbuffer_load_dwordx4 v28, s[16:19], s48 offen lds")
            k(f"s_add_u32 m0, s43, {XS + s*8192 + 1024}\ns_add_u32 s47, s42, {s*65536}\nbuffer_load_dwordx4 v29, s[16:19], s48 offen lds")
            k(f"s_add_u32 m0, s43, {WSL + s*8192}\ns_add_u32 s48, s47, 8192\nbuffer_load_dwordx4 v30, s[20:23], s47 offen lds")
            k(f"s_add_u32 m0, s43, {WSL + s*8192 + 1024}\ns_nop 0\nbuffer_load_dwordx4 v30, s[20:23], s48 offen lds")
    k(f"""
    v_lshrrev_b32 v12, 3, v1
    s_lshl_b32 s39, s36, 4
    v_add_u32 v12, s39, v12
    v_and_b32 v13, 7, v1
    v_bfe_u32 v14, v12, 1, 3
    v_xor_b32 v14, v14, v13
    v_lshlrev_b32 v14, 4, v14
    v_lshl_add_u32 v28, v12, 10, v14  ; vX
    v_xor_b32 v29, 64, v28
    v_add_u32 v29, 8192, v29
    v_bfe_u32 v14, v12, 1, 1
    v_lshlrev_b32 v14, 2, v14
    v_xor_b32 v14, v14, v13
    v_lshlrev_b32 v14, 4, v14
    v_lshl_add_u32 v30, v12, 10, v14  ; vW
    s_lshl_b32 s42, s38, 7            ; j*128
    s_lshl_b32 s43, s36, 11           ; w*2048
    s_waitcnt lgkmcnt(0)
    """)
    k.srd(16, 4, 2097152); k.srd(20, 6, 524288); k.srd(28, 72, WS_SIZE)
    dma_stage(0)
    sentinels()
    dma_stage(1); dma_stage(2)
    k("s_branch L_COMMON")
    k(f"""
    L_HELP:
    s_setprio 3
    s_and_b32 s44, s36, 3             ; a
    v_and_b32 v12, 15, v1
    s_lshr_b32 s45, s38, 1
    s_lshl_b32 s45, s45, 14
    s_lshl_b32 s46, s44, 8
    s_add_u32 s45, s45, s46
    s_add_u32 s45, s45, s41
    v_lshrrev_b32 v13, 4, v1
    v_lshlrev_b32 v13, 4, v13
    v_lshl_add_u32 v12, v12, 10, v13
    s_lshl_b32 s46, s44, 12           ; a*4096
    s_add_u32 s47, s46, {XS + 49152}
    s_waitcnt lgkmcnt(0)
    """)
    k.srd(16, 4, 2097152); k.srd(24, 8, 16384); k.srd(32, 10, 16384); k.srd(28, 72, WS_SIZE)
    k("s_bitcmp1_b32 s38, 0\ns_cbranch_scc1 L_NOKV1\ns_mov_b32 m0, s47")
    for st in range(4): k(f"buffer_load_dwordx4 {vr(64+4*st,4)}, v12, s[16:19], s45 offen offset:{st*64}")
    for st in range(4): k(f"buffer_load_dwordx4 v2, s[24:27], s46 offen offset:{st*1024} lds")
    k("s_add_u32 m0, s47, 65536\ns_nop 0")
    for st in range(4): k(f"buffer_load_dwordx4 v2, s[32:35], s46 offen offset:{st*1024} lds")
    k("L_NOKV1:\ns_setprio 0")
    sentinels()
    k.srd(32, 12, 524288)
    k(f"""
    s_cmp_eq_u32 s36, 4
    s_cbranch_scc0 L_NOWL
    s_and_b32 s46, s2, 31
    s_lshl_b32 s46, s46, 5
    s_lshl_b32 s39, s38, 16           ; s*65536 (s = id>>5)
    s_add_u32 s46, s46, s39
    v_and_b32 v12, 15, v1
    v_lshlrev_b32 v12, 1, v12
    v_lshrrev_b32 v13, 4, v1
    v_lshl_add_u32 v12, v13, 13, v12
    """)
    for e in range(16):
        row = 32*(e>>3) + 4*((e>>1)&1) + 2*((e>>2)&1) + (e&1)
        k(f"s_add_u32 s39, s46, {(row & ~3)*1024}")
        k(f"buffer_load_ushort v{128+e}, v12, s[32:35], s39 offen offset:{(row&3)*1024}")
    k(f"""
    L_NOWL:
    s_cmp_eq_u32 s36, 6
    s_cbranch_scc0 L_NOS6
    s_lshl_b32 s39, s2, 3
    s_add_u32 s39, s39, {KEY2}
    s_and_b32 s46, s2, 7
    s_mul_i32 s46, s46, 28
    s_lshr_b32 s48, s2, 3
    s_add_u32 s46, s46, s48
    s_lshl_b32 s46, s46, 4
    s_add_u32 s46, s46, {ACT}
    v_mul_u32_u24 v12, 3584, v1
    s_mov_b64 exec, 1
    buffer_store_dwordx2 v[24:25], v12, s[28:31], s39 offen sc1
    s_cmp_ge_u32 s48, 28
    s_cbranch_scc1 L_NOS6B
    s_mov_b64 exec, 3
    buffer_store_dwordx4 v[24:27], v12, s[28:31], s46 offen sc1
    L_NOS6B:
    s_mov_b64 exec, -1
    L_NOS6:
    """)
    if codepf:
        k(f"""
        s_cmp_eq_u32 s36, 5
        s_cbranch_scc0 L_NOPF
        s_getpc_b64 s[58:59]
        L_PC:
        s_sub_u32 s58, s58, L_PC-{k.name}
        s_subb_u32 s59, s59, 0
        v_mov_b32 v12, v2
        """)
        for i in range(3):
            for o in range(4): k(f"global_load_dwordx4 v[128:131], v12, s[58:59] offset:{o*1024}")
            k("v_add_u32 v12, 4096, v12")
        k("L_NOPF:")
    k(f"""
    L_COMMON:
    v_and_b32 v12, 31, v1
    s_lshl_b32 s39, s49, 5
    v_add_u32 v12, s39, v12           ; t
    v_bfe_u32 v13, v12, 1, 3
    v_lshrrev_b32 v14, 5, v1          ; h
    v_xor_b32 v13, v13, v14
    v_lshlrev_b32 v13, 4, v13
    s_lshl_b32 s39, s51, 13
    v_lshl_add_u32 v12, v12, 7, s39
    v_add_u32 v4, v12, v13
    v_xor_b32 v15, 32, v13
    v_add_u32 v5, v12, v15
    v_xor_b32 v15, 64, v13
    v_add_u32 v6, v12, v15
    v_xor_b32 v15, 0x60, v13
    v_add_u32 v7, v12, v15
    v_bfe_u32 v12, v1, 2, 2
    v_lshl_add_u32 v13, v14, 3, v12
    v_lshrrev_b32 v12, 1, v12
    v_lshlrev_b32 v12, 2, v12
    v_bfe_u32 v15, v1, 4, 1
    v_xor_b32 v15, s51, v15
    v_lshlrev_b32 v15, 1, v15
    v_bfe_u32 v8, v1, 1, 1
    v_add_u32 v15, v15, v8
    s_lshl_b32 s48, s50, 2
    v_add_u32 v15, s48, v15
    v_xor_b32 v15, v15, v12
    v_lshlrev_b32 v15, 4, v15
    v_lshl_add_u32 v8, v13, 7, v15
    v_and_b32 v15, 1, v1
    v_lshl_add_u32 v8, v15, 3, v8
    s_add_u32 s39, s39, {WSL}
    v_add_u32 v8, s39, v8
    v_mov_b32 v9, 0
    v_mov_b32 v11, 0
    """)
    ACC = 144
    for i in range(16): k(f"v_mov_b32 v{ACC+i}, 0")
    k(f"""
    s_cmp_lt_u32 s36, 4
    s_cbranch_scc1 L_B1W
    s_bitcmp1_b32 s38, 0
    s_cbranch_scc1 L_B1
    v_lshrrev_b32 v12, 4, v1
    v_bfe_u32 v13, v1, 2, 2
    v_lshl_add_u32 v12, v12, 3, v13
    v_and_b32 v13, 3, v1
    v_lshlrev_b32 v13, 3, v13
    v_lshl_add_u32 v12, v12, 5, v13
    v_add_u32 v12, s47, v12
    v_add_u32 v13, 65536, v12
    """)
    for i in range(12): k(f"v_mov_b32 v{112+i}, 0")
    k("""
    s_cmp_eq_u32 s36, 4
    s_cbranch_scc1 L_KW4
    s_cmp_eq_u32 s36, 5
    s_cbranch_scc1 L_KW5
    s_waitcnt vmcnt(4)
    s_cmp_eq_u32 s36, 6
    s_cbranch_scc1 L_KW
    s_waitcnt vmcnt(3)
    s_branch L_KW
    L_KW4:
    s_waitcnt vmcnt(19)
    s_branch L_KW
    L_KW5:
    """)
    k(f"s_waitcnt vmcnt({15 if codepf else 3})\nL_KW:\ns_setprio 3")
    ST(1)
    for st in range(4):
        k(f"ds_read_b64_tr_b16 {vr(80+4*st,2)}, v12 offset:{st*1024}\nds_read_b64_tr_b16 {vr(82+4*st,2)}, v12 offset:{st*1024+128}")
    for i in range(8): k(f"v_dot2c_f32_bf16 v120, s40, v{64+i}\nv_dot2c_f32_bf16 v121, v{64+i}, v{64+i}")
    k("s_waitcnt lgkmcnt(0)")
    for st in range(4):
        k(f"ds_read_b64_tr_b16 {vr(96+4*st,2)}, v13 offset:{st*1024}\nds_read_b64_tr_b16 {vr(98+4*st,2)}, v13 offset:{st*1024+128}")
    for st in range(4): k(f"v_mfma_f32_16x16x32_bf16 v[112:115], {vr(80+4*st,4)}, {vr(64+4*st,4)}, v[112:115]")
    for i in range(8, 16): k(f"v_dot2c_f32_bf16 v120, s40, v{64+i}\nv_dot2c_f32_bf16 v121, v{64+i}, v{64+i}")
    k("s_waitcnt lgkmcnt(0)")
    for st in range(4): k(f"v_mfma_f32_16x16x32_bf16 v[116:119], {vr(64+4*st,4)}, {vr(96+4*st,4)}, v[116:119]")
    for i in range(16): k(f"v_dot2c_f32_bf16 v122, s40, v{80+i}\nv_dot2c_f32_bf16 v123, s40, v{96+i}")
    k(f"""
    s_mul_i32 s46, s44, 3072
    s_add_u32 s46, s46, {EX}
    v_mul_u32_u24 v12, 48, v1
    v_add_u32 v13, s46, v12
    ds_write_b128 v13, v[112:115]
    ds_write_b128 v13, v[116:119] offset:16
    ds_write_b128 v13, v[120:123] offset:32
    s_waitcnt lgkmcnt(0)
    s_branch L_B1
    L_B1W:
    s_waitcnt vmcnt(19)
    L_B1:
    """)
    ST(18)
    k(f"""
    s_barrier
    """)
    ST(19)
    k(f"""
    s_cmp_lt_u32 s36, 4
    s_cbranch_scc0 L_H2
    """)
    dma_stage(3)
    k(f"""
    s_branch L_QLOOP0
    L_H2:
    s_cmp_eq_u32 s36, 7
    s_cbranch_scc0 L_QLOOP0
    s_bitcmp1_b32 s38, 0
    s_cbranch_scc1 L_QLOOP0
    v_add_u32 v12, {EX}, v12
    """)
    for a in range(3):
        for i in range(3): k(f"ds_read_b128 {vr(64+12*a+4*i,4)}, v12 offset:{a*3072+16*i}")
    for a in range(3):
        k(f"s_waitcnt lgkmcnt({6-3*a})")
        for i in range(12): k(f"v_add_f32 v{112+i}, v{112+i}, v{64+12*a+i}")
    for op in ('v_permlane16_swap_b32', 'v_permlane32_swap_b32'):
        for i in range(4): k(f"v_mov_b32 v{64+i}, v{120+i}")
        k("s_nop 0")
        for i in range(4): k(f"{op} v{120+i}, v{64+i}")
        for i in range(4): k(f"v_add_f32 v{120+i}, v{120+i}, v{64+i}")
    k(f"""
    v_mul_f32 v120, {f32(1/512)}, v120
    v_mul_f32 v121, {f32(1/512)}, v121
    v_fma_f32 v121, -v120, v120, v121
    v_add_f32 v121, {f32(1e-5)}, v121
    v_rsq_f32 v121, v121
    v_and_b32 v12, 15, v1
    v_lshlrev_b32 v13, 2, v12
    v_add_u32 v13, {X2}, v13
    ds_write_b32 v13, v120
    ds_write_b32 v13, v121 offset:64
    ds_write_b32 v13, v122 offset:128
    v_lshrrev_b32 v14, 4, v1
    v_lshlrev_b32 v13, 4, v14
    v_add_u32 v13, {X2}, v13
    s_waitcnt lgkmcnt(0)
    ds_read_b128 v[64:67], v13
    ds_read_b128 v[68:71], v13 offset:64
    ds_read_b128 v[72:75], v13 offset:128
    s_lshl_b32 s46, s37, 1
    s_lshr_b32 s47, s38, 2
    s_add_u32 s46, s46, s47
    s_lshl_b32 s46, s46, 11                     ; kt*2048
    s_bfe_u32 s47, s38, 0x10001                 ; b
    s_lshl_b32 s47, s47, 8
    s_add_u32 s46, s46, s47
    s_add_u32 s47, s46, s47
    s_add_u32 s47, s47, 1024                    ; V soffset
    v_and_b32 v13, 1, v14
    v_lshrrev_b32 v14, 1, v14
    v_lshlrev_b32 v12, 4, v12
    v_lshl_add_u32 v15, v13, 9, v12
    v_lshl_add_u32 v15, v14, 3, v15             ; K voffset
    v_lshl_add_u32 v12, v13, 3, v12
    v_lshl_add_u32 v12, v14, 8, v12             ; V voffset
    s_waitcnt lgkmcnt(0)
    """)
    for r in range(4): k(f"v_fma_f32 v{112+r}, -v120, v{72+r}, v{112+r}\nv_fma_f32 v{116+r}, -v{64+r}, v123, v{116+r}")
    for r in range(4): k(f"v_mul_f32 v{112+r}, v{112+r}, v121\nv_mul_f32 v{116+r}, v{116+r}, v{68+r}")
    k(f"""
    v_cvt_pk_bf16_f32 v112, v112, v113
    v_cvt_pk_bf16_f32 v113, v114, v115
    v_cvt_pk_bf16_f32 v116, v116, v117
    v_cvt_pk_bf16_f32 v117, v118, v119
    buffer_store_dwordx2 v[112:113], v15, s[28:31], s46 offen sc1
    buffer_store_dwordx2 v[116:117], v12, s[28:31], s47 offen sc1
    s_cmp_lg_u32 s2, 0
    s_cbranch_scc1 L_NOZ
    v_mov_b32 v64, 0
    v_mov_b32 v65, 0
    v_mov_b32 v66, 0
    v_mov_b32 v67, 0
    s_mov_b32 s46, {CNTB}
    buffer_store_dwordx4 v[64:67], v2, s[28:31], s46 offen sc1
    L_NOZ:
    s_and_b32 s46, s37, 1
    s_lshl_b32 s46, s46, 7
    v_mov_b32 v12, s46
    v_mov_b32 v13, 1
    s_mov_b64 exec, 1
    s_waitcnt vmcnt(0)
    global_atomic_add v12, v13, s[70:71] sc1
    s_mov_b64 exec, -1
    """)
    ST(2)
    k(f"""
    L_QLOOP0:
    s_setprio 0
    s_mov_b32 s57, 0
    s_xor_b32 s58, s49, s51
    L_QLOOP:
    """)
    for sp in range(4):
        k(f"ds_read_b128 {vr(32+4*sp,4)}, v{4+sp}")
        k(f"ds_read_b64_tr_b16 {vr(48+4*sp,2)}, v8 offset:{sp*2048}")
        k(f"ds_read_b64_tr_b16 {vr(50+4*sp,2)}, v8 offset:{sp*2048+512}")
    for i in range(5): k(f"v_add_u32 v{4+i}, 16384, v{4+i}")
    for sp in range(4):
        k(f"s_waitcnt lgkmcnt({9-3*sp})")
        k(f"v_mfma_f32_32x32x16_bf16 {vr(ACC,16)}, {vr(48+4*sp,4)}, {vr(32+4*sp,4)}, {vr(ACC,16)}")
    k("s_cmp_eq_u32 s50, 0\ns_cbranch_scc0 L_QSQ")
    for i in range(16): k(f"v_dot2c_f32_bf16 v9, s40, v{32+i}")
    k("s_branch L_QCS\nL_QSQ:")
    for i in range(16): k(f"v_dot2c_f32_bf16 v9, v{32+i}, v{32+i}")
    k("L_QCS:\ns_xor_b32 s39, s58, s57\ns_bitcmp1_b32 s39, 0\ns_cbranch_scc1 L_QNX")
    for i in range(16): k(f"v_dot2c_f32_bf16 v11, s40, v{48+i}")
    k(f"""
    L_QNX:
    s_add_u32 s57, s57, 1
    s_cmp_eq_u32 s57, 4
    s_cbranch_scc1 L_QDONE
    s_cmp_ge_u32 s36, 4
    s_cbranch_scc1 L_QB
    s_waitcnt vmcnt(16)
    s_cmp_eq_u32 s57, 1
    s_cbranch_scc1 L_QB
    s_waitcnt vmcnt(8)
    s_cmp_eq_u32 s57, 2
    s_cbranch_scc1 L_QB
    s_waitcnt vmcnt(0)
    L_QB:
    s_barrier
    s_branch L_QLOOP
    L_QDONE:
    v_mov_b32 v12, v9
    v_mov_b32 v14, v11
    s_lshl_b32 s46, s36, 11
    s_add_u32 s46, s46, {QX}
    v_permlane32_swap_b32 v9, v12
    v_permlane32_swap_b32 v11, v14
    v_add_f32 v9, v9, v12
    v_add_f32 v11, v11, v14
    v_lshl_add_u32 v12, v1, 5, s46
    ds_write_b128 v12, {vr(ACC+8,4)}
    ds_write_b128 v12, {vr(ACC+12,4)} offset:16
    s_xor_b32 s46, s36, 4
    s_lshl_b32 s46, s46, 11
    s_add_u32 s46, s46, {QX}
    v_lshl_add_u32 v12, v1, 5, s46
    v_and_b32 v13, 31, v1
    s_lshl_b32 s47, s36, 7
    s_add_u32 s46, s47, {STX}
    v_lshl_add_u32 v14, v13, 2, s46
    ds_write_b32 v14, v9
    s_lshl_b32 s46, s49, 7
    s_add_u32 s46, s46, {STX}
    v_lshl_add_u32 v14, v13, 2, s46
    s_lshl_b32 s46, s51, 4
    v_xor_b32 v13, s46, v13
    s_add_u32 s46, s47, {CSX}
    v_lshl_add_u32 v13, v13, 2, s46
    ds_write_b32 v13, v11
    s_lshl_b32 s46, s50, 8
    s_lshl_b32 s47, s51, 6
    s_add_u32 s46, s46, s47
    s_add_u32 s46, s46, {CSX}
    v_lshrrev_b32 v13, 5, v1
    v_lshl_add_u32 v13, v13, 4, s46
    s_waitcnt lgkmcnt(0)
    s_barrier
    ds_read_b32 v16, v14
    ds_read_b32 v17, v14 offset:512
    ds_read_b32 v18, v14 offset:256
    ds_read_b32 v19, v14 offset:768
    """)
    for i, o in enumerate((0, 128, 512, 640)):
        k(f"ds_read_b128 {vr(32+8*i,4)}, v13 offset:{o}\nds_read_b128 {vr(36+8*i,4)}, v13 offset:{o+32}")
    k(f"""
    ds_read_b128 v[64:67], v12
    ds_read_b128 v[68:71], v12 offset:16
    s_waitcnt lgkmcnt(10)
    v_add_f32 v16, v16, v17
    v_add_f32 v18, v18, v19
    v_mul_f32 v16, {f32(1/512)}, v16
    v_mul_f32 v18, {f32(1/512)}, v18
    v_fma_f32 v18, -v16, v16, v18
    v_add_f32 v18, {f32(1e-5)}, v18
    v_rsq_f32 v18, v18
    s_waitcnt lgkmcnt(6)
    """)
    for i in range(8): k(f"v_add_f32 v{32+i}, v{32+i}, v{40+i}")
    k(f"v_mul_f32 v18, {f32(CSCALE)}, v18\ns_waitcnt lgkmcnt(2)")
    for i in range(8): k(f"v_add_f32 v{48+i}, v{48+i}, v{56+i}")
    for i in range(8): k(f"v_add_f32 v{32+i}, v{32+i}, v{48+i}")
    k("s_waitcnt lgkmcnt(0)")
    for i in range(8): k(f"v_add_f32 v{ACC+i}, v{ACC+i}, v{64+i}")
    for i in range(8): k(f"v_fma_f32 v{ACC+i}, -v16, v{32+i}, v{ACC+i}")
    for i in range(8): k(f"v_mul_f32 v{ACC+i}, v{ACC+i}, v18")
    Q, KF, VL, VH, IDX, AK, AV, C, SA, SB, O, STG = 4, 8, 12, 16, 20, 21, 22, 32, 48, 64, 80, 96
    for i in range(4): k(f"v_cvt_pk_bf16_f32 v{Q+i}, v{ACC+2*i}, v{ACC+2*i+1}")
    k("s_cmp_eq_u32 s36, 4\ns_cbranch_scc0 L_NOWO\ns_waitcnt vmcnt(0)")
    for i in range(8): k(f"v_lshl_or_b32 v{80+i}, v{129+2*i}, 16, v{128+2*i}")
    k(f"""
    s_lshl_b32 s46, s2, 11
    s_add_u32 s46, s46, {WOT}
    buffer_store_dwordx4 v[80:83], v2, s[28:31], s46 offen sc1
    buffer_store_dwordx4 v[84:87], v2, s[28:31], s46 offen offset:1024 sc1
    L_NOWO:
    """)
    k(f"""
    s_lshl_b32 s47, s36, 11
    v_add_u32 v23, s47, v2
    s_mul_i32 s47, s36, {TP}
    v_add_u32 v24, s47, v2
    v_lshrrev_b32 v26, 5, v1
    v_and_b32 v27, 31, v1
    v_mul_u32_u24 v25, 528, v26
    v_lshl_add_u32 v25, v27, 4, v25
    s_add_u32 s48, s47, 1024
    v_add_u32 v25, s48, v25
    v_bfe_u32 v28, v1, 1, 3
    v_mul_u32_u24 v28, {8*TP}, v28
    v_and_b32 v29, 1, v1
    v_mul_u32_u24 v29, 528, v29
    s_add_u32 s48, s47, 1536
    v_add3_u32 v28, v28, v29, s48
    v_mov_b32 v{C}, 0x3f803f80
    v_mov_b32 v{C+1}, 0x3f803f80
    v_mov_b32 v{C+2}, 0x3f803f80
    v_mov_b32 v{C+3}, 0x3f803f80
    v_lshlrev_b32 v26, 8, v26
    v_lshl_add_u32 v26, v27, 4, v26
    v_mov_b32 v29, 512
    v_cmp_gt_u32 vcc, 16, v27
    v_mov_b32 v{IDX}, 0xdddddddd
    v_add_u32 v30, {4*8*TP}, v24
    v_cndmask_b32 v26, v29, v26, vcc
    v_add_u32 v26, 1024, v26
    v_mov_b32 v29, 0x100000
    v_cmp_lt_u32 vcc, 16, v27
    v_add_u32 v31, {4*8*TP}, v25
    s_mov_b32 s44, 2
    v_cndmask_b32 v26, v26, v29, vcc
    s_mov_b32 s45, {f32(-OFF)}
    """)
    ST(3)
    k(f"""
    s_cmp_lg_u32 s36, 0
    s_cbranch_scc1 L_SA_DONE
    v_lshlrev_b32 v29, 7, v1
    s_mov_b32 s39, {SPIN}
    s_mov_b64 exec, 3
    L_SA_POLL:
    global_load_dword v8, v29, s[70:71] sc1
    s_sub_u32 s39, s39, 1
    s_cbranch_scc1 L_SA_OUT
    s_waitcnt vmcnt(0)
    v_cmp_gt_u32 vcc, 64, v8
    s_cbranch_vccnz L_SA_POLL
    L_SA_OUT:
    s_mov_b64 exec, -1
    L_SA_DONE:
    s_barrier
    """)
    ST(4)
    for i in range(8):
        k(f"s_mov_b32 s47, {KVF + i*16384}")
        k(f"buffer_load_dwordx4 {vr(STG+8*i,4)}, v23, s[28:31], s47 offen sc1")
        k(f"buffer_load_dwordx4 {vr(STG+8*i+4,4)}, v23, s[28:31], s47 offen offset:1024 sc1")
        if i == 1: k("s_barrier")
    k(f"ds_write_b128 v28, {vr(C,4)}\ns_waitcnt vmcnt(12)")
    for i in range(2):
        k(f"ds_write_b128 v24, {vr(STG+8*i,4)} offset:{i*8*TP}\nds_write_b128 v25, {vr(STG+8*i+4,4)} offset:{i*8*TP}")
    k(f"""
    s_mov_b32 s43, 1
    s_waitcnt lgkmcnt(0)
    s_barrier
    s_cmp_lg_u32 s36, 1
    s_cbranch_scc1 L_NOB
    s_and_b32 s46, s2, 7
    s_lshl_b32 s46, s46, 7
    s_add_u32 s46, s46, {CNTB}
    v_mov_b32 v28, s46
    v_mov_b32 v29, 1
    s_mov_b64 exec, 1
    global_atomic_add v28, v29, s[72:73] sc1
    s_mov_b64 exec, -1
    L_NOB:
    s_cmp_eq_u32 s51, 0
    s_cbranch_scc1 L_PA
    s_setprio 1
    s_branch L_RETRY
    L_PA:
    s_setprio 2
    L_RETRY:
    v_mov_b32 v{AK}, v2
    v_mov_b32 v28, 0xff800000
    s_mov_b32 s57, s44
    L_MAX:
    ds_read_b128 {vr(KF,4)}, v{AK}
    v_add_u32 v{AK}, {TP}, v{AK}
    s_sub_u32 s57, s57, 1
    s_waitcnt lgkmcnt(0)
    v_mfma_f32_32x32x16_bf16 {vr(SA,16)}, {vr(KF,4)}, {vr(Q,4)}, 0
    s_nop 11
    """)
    for i in range(8): k(f"v_max3_f32 v28, v28, v{SA+2*i}, v{SA+2*i+1}")
    k(f"""
    s_cmp_lg_u32 s57, 0
    s_cbranch_scc1 L_MAX
    v_mov_b32 v{AK}, v2
    v_mov_b32 v{AV}, v26
    ds_read_b128 {vr(KF,4)}, v{AK}
    ds_read_b128 {vr(VH,4)}, v{AV}
    """)
    allreduce_halves(k, 28, 29, 'v_max_f32')
    k(f"v_sub_f32 v{C}, s45, v28")
    for i in range(1, 16): k(f"v_mov_b32 v{C+i}, v{C}")
    k(f"""
    s_waitcnt lgkmcnt(1)
    s_nop 0
    v_mfma_f32_32x32x16_bf16 {vr(SA,16)}, {vr(KF,4)}, {vr(Q,4)}, {vr(C,16)}
    ds_read_b128 {vr(KF,4)}, v{AK} offset:{TP}
    ds_read_b128 {vr(VL,4)}, v{AV}
    """)
    for i in range(16): k(f"v_mov_b32 v{O+i}, 0")
    for i in range(8): k(f"v_mov_b32 v{SB+8+i}, 0")
    k("s_mov_b32 s57, 0")
    ST(5)
    k(".p2align 3\nL_LOOP:")
    for u in range(4):
        cur, oth = (SA, SB) if u % 2 == 0 else (SB, SA)
        for e in range(16):
            k(f"v_exp_f32 v{cur+e}, v{cur+e}")
            if e == 1: k(f"s_waitcnt lgkmcnt(2)\nv_smfmac_f32_32x32x32_bf16 {vr(O,16)}, {vr(VH,4)}, {vr(oth+8,8)}, v{IDX}\nds_read_b128 {vr(VH,4)}, v{AV} offset:{u*TP+528}")
            if e == 5: k(f"s_waitcnt lgkmcnt(2)\nv_mfma_f32_32x32x16_bf16 {vr(oth,16)}, {vr(KF,4)}, {vr(Q,4)}, {vr(C,16)}\nds_read_b128 {vr(KF,4)}, v{AK} offset:{(u+2)*TP}")
            if e == 10: k(f"s_waitcnt lgkmcnt(2)\nv_smfmac_f32_32x32x32_bf16 {vr(O,16)}, {vr(VL,4)}, {vr(cur,8)}, v{IDX}\nds_read_b128 {vr(VL,4)}, v{AV} offset:{(u+1)*TP}")
    k(f"""
    v_add_u32 v{AK}, {4*TP}, v{AK}
    v_add_u32 v{AV}, {4*TP}, v{AV}
    s_add_u32 s57, s57, 1
    s_cmp_lg_u32 s43, 0
    s_cbranch_scc1 L_EVENT
    L_BACK:
    s_cmp_lt_u32 s57, 16
    s_cbranch_scc1 L_LOOP
    s_waitcnt lgkmcnt(0)
    v_smfmac_f32_32x32x32_bf16 {vr(O,16)}, {vr(VH,4)}, {vr(SB+8,8)}, v{IDX}
    s_mov_b32 s43, 0
    s_nop 10
    v_mov_b32 v29, v{O+8}
    v_add_f32 v28, abs(v{O}), abs(v{O+1})
    v_add_f32 v28, v28, abs(v{O+2})
    v_permlane32_swap_b32 v{O+8}, v29
    v_rcp_f32 v29, v{O+8}
    v_fmac_f32 v28, {f32(256.0)}, v{O+8}
    """)
    for i in range(3, 8): k(f"v_add_f32 v28, v28, abs(v{O+i})")
    for i in range(8): k(f"v_mul_f32 v{O+i}, v{O+i}, v29")
    k(f"""
    v_mov_b32 v29, 0x7f800000
    v_cmp_nlt_f32 vcc, v28, v29
    s_cmp_eq_u32 s44, 64
    s_cbranch_scc1 L_OK
    s_cbranch_vccz L_OK
    s_mov_b32 s44, 64
    s_mov_b32 s45, 0
    s_branch L_RETRY
    L_OK:
    """)
    for i in range(4): k(f"v_cvt_pk_bf16_f32 v{O+i}, v{O+2*i}, v{O+2*i+1}")
    for i in range(4): k(f"v_min_u32 v{O+i}, -2, v{O+i}")
    k(f"buffer_store_dwordx4 {vr(O,4)}, v3, s[28:31], s56 offen sc1\ns_setprio 0")
    ST(6)
    A, T, LATE, RES = 32, 16, 64, 96
    AX = 131072
    HX = 0
    k(f"""
    s_lshl_b32 s42, s36, 13
    s_add_u32 s42, s42, {WOT}         ; WOT + w*8192
    s_lshl_b32 s41, s36, 14
    s_lshl_b32 s46, s53, 13
    s_lshl_b32 s47, s36, 10
    s_add_u32 s46, s46, s47
    s_add_u32 s46, s46, {OB}
    s_add_u32 s47, s47, {AX}
    v_add_u32 v5, s47, v2
    v_add_u32 v6, s41, v2
    v_add_u32 v4, {AX}, v2
    v_bfe_u32 v8, v1, 3, 1
    v_mov_b32 v7, 0x44444444
    v_mov_b32 v9, 0xeeeeeeee
    v_cmp_eq_u32 vcc, 1, v8
    """)
    k.srd(20, 60, 1024); k.srd(24, 68, 2097152)
    k("v_cndmask_b32 v7, v7, v9, vcc\ns_barrier")
    ST(7)
    late = []
    for s in (6, 7):
        for q in range(2):
            pre = f"s_add_u32 m0, s41, {(s-6)*8192 + q*4096}\ns_add_u32 s48, s42, {s*65536 + q*4096}\n"
            for o in range(4):
                late.append((pre if o == 0 else '') + f"buffer_load_dwordx4 v2, s[28:31], s48 offen offset:{o*1024} sc1 lds")
    first = []
    for q in range(2):
        pre = f"s_add_u32 s48, s42, {5*65536 + q*4096}\n"
        for o in range(4): first.append((pre if o == 0 else '') + f"buffer_load_dwordx4 {vr(LATE+16*q+4*o,4)}, v2, s[28:31], s48 offen offset:{o*1024} sc1")
    allv = first + late
    assert late_split % 4 == 0
    k(f"buffer_load_dwordx4 v[8:11], v2, s[16:19], s55 offen\nbuffer_load_dwordx4 v[12:15], v2, s[20:23], 0 offen")
    for x in allv[:late_split]: k(x)
    for i in range(16): k(f"v_mov_b32 v{T+i}, 0")
    k(f"""
    s_mov_b32 s39, {SPIN}
    L_OP_POLL:
    buffer_load_dwordx4 {vr(A,4)}, v2, s[28:31], s46 offen sc1
    s_sub_u32 s39, s39, 1
    s_cbranch_scc1 L_OP_OUT
    s_waitcnt vmcnt(0)
    v_max3_u32 v{A+4}, v{A}, v{A+1}, v{A+2}
    v_max_u32 v{A+4}, v{A+4}, v{A+3}
    v_cmp_eq_u32 vcc, -1, v{A+4}
    s_cbranch_vccnz L_OP_POLL
    L_OP_OUT:
    s_waitcnt vmcnt(0)
    ds_write_b128 v5, {vr(A,4)}
    """)
    ST(8)
    for x in allv[late_split:]: k(x)
    k("s_waitcnt lgkmcnt(0)\ns_barrier")
    ST(9)
    for s in range(8): k(f"ds_read_b128 {vr(A+4*s,4)}, v4 offset:{s*1024}")
    for s in range(5):
        k(f"s_waitcnt lgkmcnt({7-s})")
        for i in range(4): k(f"v_smfmac_f32_16x16x64_bf16 {vr(T+4*i,4)}, {vr(A+4*s,4)}, {vr(RES+32*s+8*i,8)}, v7")
    rem = len(allv) - late_split
    k(f"s_waitcnt vmcnt({min(rem, 16)}) lgkmcnt(0)")
    for i in range(4): k(f"v_smfmac_f32_16x16x64_bf16 {vr(T+4*i,4)}, {vr(A+20,4)}, {vr(LATE+8*i,8)}, v7")
    for s in (6, 7):
        k(f"s_waitcnt vmcnt({min(rem, 8) if s == 6 else 0})")
        for o in range(8): k(f"ds_read_b128 {vr(RES+32*(s-6)+4*o,4)}, v6 offset:{(s-6)*8192+o*1024}")
        for i in range(4):
            k(f"s_waitcnt lgkmcnt({6-2*i})")
            k(f"v_smfmac_f32_16x16x64_bf16 {vr(T+4*i,4)}, {vr(A+4*s,4)}, {vr(RES+32*(s-6)+8*i,8)}, v7")
    for i in range(4):
        k(f"v_lshlrev_b32 v{48+2*i}, 16, v{8+i}\nv_and_b32 v{49+2*i}, 0xffff0000, v{8+i}")
    ST(10)
    k("s_barrier")
    for r in range(4): k(f"v_permlane32_swap_b32 v{T+r}, v{T+8+r}\nv_permlane32_swap_b32 v{T+4+r}, v{T+12+r}")
    for r in range(4): k(f"v_add_f32 v{T+r}, v{T+r}, v{T+8+r}\nv_add_f32 v{T+4+r}, v{T+4+r}, v{T+12+r}")
    k(f"""
    v_and_b32 v4, 15, v1
    v_lshlrev_b32 v4, 2, v4
    v_lshrrev_b32 v5, 5, v1
    v_lshl_add_u32 v4, v5, 7, v4
    v_bfe_u32 v5, v1, 4, 1
    v_mul_u32_u24 v5, {4*2112}, v5
    s_lshl_b32 s46, s36, 8
    v_add3_u32 v4, v4, v5, s46
    """)
    for r in range(4): k(f"ds_write_b32 v4, v{T+r} offset:{HX + r*2112}\nds_write_b32 v4, v{T+4+r} offset:{HX + r*2112+64}")
    k(f"s_mul_i32 s46, s36, 2112\nv_lshl_add_u32 v4, v1, 5, s46")
    for i in range(4):
        k(f"v_lshlrev_b32 v{56+2*i}, 16, v{12+i}\nv_and_b32 v{57+2*i}, 0xffff0000, v{12+i}")
    k("v_add_f32 v35, v56, v57")
    for i in range(2, 8): k(f"v_add_f32 v35, v35, v{56+i}")
    k(f"s_waitcnt lgkmcnt(0)\ns_barrier\nds_read_b128 v[40:43], v4 offset:{HX}\nds_read_b128 v[44:47], v4 offset:{HX+16}")
    WD = 32768
    k(f"""
    s_cmp_lt_u32 s2, 224
    s_cbranch_scc1 L_NOWD
    """)
    k.srd(32, 66, 1792*1024)
    k(f"""
    v_lshrrev_b32 v5, 1, v1
    v_lshlrev_b32 v5, 10, v5
    v_and_b32 v6, 1, v1
    v_lshl_add_u32 v5, v6, 4, v5
    s_mul_i32 s46, s36, {224*1024}
    s_sub_u32 s58, s2, 224
    s_lshl_b32 s58, s58, 5
    s_add_u32 s46, s46, s58
    s_mul_i32 s59, s36, 7168
    s_add_u32 s59, s59, {WD}
    """)
    for s in range(7):
        k(f"s_add_u32 m0, s59, {s*1024}\ns_add_u32 s47, s46, {s*32*1024}\nbuffer_load_dwordx4 v5, s[32:35], s47 offen lds")
    k("L_NOWD:\ns_waitcnt lgkmcnt(0)")
    for i in range(8): k(f"v_add_f32 v{40+i}, v{40+i}, v{48+i}")
    k("v_add_f32 v32, v40, v41\nv_mul_f32 v33, v40, v40\nv_mul_f32 v34, v40, v56\nv_fmac_f32 v33, v41, v41\nv_fmac_f32 v34, v41, v57")
    for i in range(2, 8): k(f"v_add_f32 v32, v32, v{40+i}\nv_fmac_f32 v33, v{40+i}, v{40+i}\nv_fmac_f32 v34, v{40+i}, v{56+i}")
    wave_reduce3(k, [32, 33, 34, 35], [44, 45, 46, 47])
    k(f"""
    v_mov_b32 v36, {f32(1/512)}
    v_mul_f32 v32, s44, v36
    v_mul_f32 v33, s45, v36
    v_fma_f32 v33, -v32, v32, v33
    v_add_f32 v33, {f32(1e-5)}, v33
    v_rsq_f32 v33, v33
    v_mov_b32 v34, s46
    v_fma_f32 v34, -v32, s47, v34
    v_mul_f32 v34, v34, v33           ; r
    v_mul_f32 v35, v32, v33
    v_ashrrev_i32 v36, 31, v34
    v_or_b32 v36, 0x80000000, v36
    v_xor_b32 v34, v34, v36
    v_and_b32 v34, 0xfffff800, v34
    s_sub_u32 s47, 2047, s54
    v_or_b32 v34, s47, v34
    v_min_u32 v34, -2, v34
    s_lshl_b32 s46, s36, 2
    s_add_u32 s46, s46, {MISC}
    v_mov_b32 v36, s46
    ds_write_b32 v36, v34
    """)
    for i in range(8): k(f"v_fma_f32 v{48+i}, v{40+i}, v33, -v35")
    for i in range(8): k(f"v_add_f32 v{40+i}, v{40+i}, v{48+i}")
    k("s_waitcnt lgkmcnt(0)\ns_barrier")
    ST(11)
    k(f"""
    s_cmp_lg_u32 s36, 0
    s_cbranch_scc1 L_NOKEY
    v_mov_b32 v36, {MISC}
    ds_read_b128 v[16:19], v36
    ds_read_b128 v[20:23], v36 offset:16
    s_lshl_b32 s46, s2, 3
    s_add_u32 s46, s46, {KEY2}
    v_mov_b32 v36, 0
    s_waitcnt lgkmcnt(0)
    v_max_u32 v24, v16, v17
    v_min_u32 v25, v16, v17
    """)
    for i in range(2, 8): k(f"v_med3_u32 v25, v24, v25, v{16+i}\nv_max_u32 v24, v24, v{16+i}")
    k(f"""
    s_mov_b64 exec, 1
    buffer_store_dwordx2 v[24:25], v36, s[28:31], s46 offen sc1
    s_mov_b64 exec, -1
    L_NOKEY:
    """)
    for i in range(4): k(f"v_cvt_pk_bf16_f32 v{48+i}, v{48+2*i}, v{49+2*i}\nv_cvt_pk_bf16_f32 v{40+i}, v{40+2*i}, v{41+2*i}")
    for i in range(4): k(f"v_min_u32 v{48+i}, -2, v{48+i}\nv_min_u32 v{40+i}, -2, v{40+i}")
    k(f"""
    s_add_u32 s46, s55, {HN}
    buffer_store_dwordx4 v[48:51], v2, s[28:31], s46 offen sc1
    s_add_u32 s46, s55, {BASE}
    buffer_store_dwordx4 v[40:43], v2, s[28:31], s46 offen sc1
    s_cmp_lg_u32 s36, 0
    s_cbranch_scc1 L_TOPW
    """)
    Bf, Af = 64, 128
    k(f"""
    v_lshrrev_b32 v7, 4, v1
    v_bfe_u32 v4, v1, 2, 2
    v_lshl_add_u32 v4, v7, 3, v4
    v_lshlrev_b32 v4, 4, v4
    v_and_b32 v6, 1, v1
    v_lshl_add_u32 v4, v6, 3, v4
    v_bfe_u32 v6, v1, 1, 1
    v_lshl_add_u32 v4, v6, 13, v4
    v_add_u32 v4, {FW}, v4
    s_mov_b32 s46, {KEY2}
    s_mov_b32 s39, {SPIN}
    """)
    for s in range(16):
        k(f"ds_read_b64_tr_b16 {vr(Bf+4*s,2)}, v4 offset:{s*512}\nds_read_b64_tr_b16 {vr(Bf+4*s+2,2)}, v4 offset:{s*512+64}")
        if s % 4 == 3 and s < 15: k("s_waitcnt lgkmcnt(4)")
    ST(12)
    k(f"""
    L_KEY_POLL:
    buffer_load_dwordx4 v[16:19], v2, s[28:31], s46 offen sc1
    buffer_load_dwordx4 v[20:23], v2, s[28:31], s46 offen offset:1024 sc1
    s_sub_u32 s39, s39, 1
    s_cbranch_scc1 L_KEY_OUT
    s_waitcnt vmcnt(0)
    v_max3_u32 v24, v16, v17, v18
    v_max3_u32 v25, v19, v20, v21
    v_max3_u32 v24, v24, v22, v23
    v_max_u32 v24, v24, v25
    v_cmp_eq_u32 vcc, -1, v24
    s_cbranch_vccnz L_KEY_POLL
    L_KEY_OUT:
    s_waitcnt vmcnt(0)
    """)
    ST(13)
    top2(k, 16, 8, 24, 25, 26, 27, 44, 45)
    k(f"""
    v_mov_b32 v36, {MISC+64}
    ds_write_b64 v36, v[24:25]
    s_waitcnt lgkmcnt(0)
    L_TOPW:
    s_barrier
    s_cmp_eq_u32 s36, 0
    s_cbranch_scc1 L_HAVETOP
    v_mov_b32 v36, {MISC+64}
    ds_read_b64 v[24:25], v36
    s_waitcnt lgkmcnt(0)
    v_readfirstlane_b32 s44, v24
    v_readfirstlane_b32 s45, v25
    L_HAVETOP:
    s_andn2_b32 s46, 0x7ff, s44       ; token1
    s_andn2_b32 s47, 0x7ff, s45       ; token2
    s_cmp_lt_u32 s2, 224
    s_cbranch_scc0 L_DOWN
    s_cmp_eq_u32 s36, 0
    s_cbranch_scc0 L_STOUT
    """)
    ST(14)
    k(f"""
    s_lshl_b32 s58, s46, 10
    s_lshl_b32 s59, s47, 10
    v_and_b32 v4, 1, v1
    v_mov_b32 v5, s58
    v_mov_b32 v6, s59
    v_cmp_eq_u32 vcc, 1, v4
    s_mov_b32 s48, {HN}
    s_mov_b32 s39, {SPIN}
    v_cndmask_b32 v5, v5, v6, vcc
    v_lshl_add_u32 v5, v7, 4, v5
    L_HN_POLL:
    """)
    for s in range(16): k(f"buffer_load_dwordx4 {vr(Af+4*s,4)}, v5, s[28:31], s48 offen offset:{s*64} sc1")
    k("v_mov_b32 v8, 0\nv_mov_b32 v9, 0\nv_mov_b32 v10, 0\nv_mov_b32 v11, 0\nv_mov_b32 v12, 0")
    for s in range(16):
        k(f"s_waitcnt vmcnt({15-s})\nv_mfma_f32_16x16x32_bf16 v[8:11], {vr(Af+4*s,4)}, {vr(Bf+4*s,4)}, v[8:11]")
        k(f"v_max3_u32 v12, v12, v{Af+4*s}, v{Af+4*s+1}\nv_max3_u32 v12, v12, v{Af+4*s+2}, v{Af+4*s+3}")
    k(f"""
    v_cmp_eq_u32 vcc, -1, v12
    s_sub_u32 s39, s39, 1
    s_cbranch_scc1 L_HN_OUT
    s_nop 4
    s_cbranch_vccnz L_HN_POLL
    L_HN_OUT:
    s_nop 4
    """)
    ST(15)
    k(f"""
    v_mul_f32 v12, {f32(-LOG2E)}, v8
    v_mul_f32 v13, {f32(-LOG2E)}, v9
    v_exp_f32 v12, v12
    v_exp_f32 v13, v13
    v_mov_b32_dpp v14, v8 row_ror:8
    v_mov_b32_dpp v15, v9 row_ror:8
    v_add_f32 v12, 1.0, v12
    v_add_f32 v13, 1.0, v13
    v_rcp_f32 v12, v12
    v_rcp_f32 v13, v13
    v_mul_f32 v8, v8, v14
    v_mul_f32 v9, v9, v15
    v_mul_f32 v8, v8, v12
    v_mul_f32 v9, v9, v13
    v_cmp_lt_u32 vcc, 15, v1
    s_and_b32 s58, s2, 7
    s_mul_i32 s58, s58, 28
    v_cndmask_b32 v8, v8, v9, vcc
    s_lshr_b32 s59, s2, 3
    s_add_u32 s58, s58, s59
    v_mov_b32_dpp v9, v8 quad_perm:[1,0,3,2]
    s_lshl_b32 s58, s58, 4
    s_add_u32 s58, s58, {ACT}
    v_cvt_pk_bf16_f32 v8, v8, v9
    v_mul_u32_u24 v9, 3584, v7
    v_min_u32 v8, -2, v8
    v_and_b32 v10, 7, v1
    v_lshl_add_u32 v9, v10, 1, v9
    s_mov_b64 exec, 0x550055
    buffer_store_dword v8, v9, s[28:31], s58 offen sc1
    s_mov_b64 exec, -1
    L_STOUT:
    s_cmp_eq_u32 s54, s46
    s_cbranch_scc1 L_END
    s_cmp_eq_u32 s54, s47
    s_cbranch_scc1 L_END
    buffer_store_dwordx4 v[40:43], v2, s[24:27], s55 offen
    L_END:
    s_endpgm
    """)
    PX = MISC + 128
    k(f"""
    L_DOWN:
    s_cmp_eq_u32 s54, s46
    s_cbranch_scc1 L_DN1
    s_cmp_eq_u32 s54, s47
    s_cbranch_scc1 L_DN1
    buffer_store_dwordx4 v[40:43], v2, s[24:27], s55 offen
    L_DN1:
    v_lshrrev_b32 v7, 4, v1
    v_bfe_u32 v4, v1, 2, 2
    v_lshl_add_u32 v4, v7, 3, v4
    v_lshlrev_b32 v4, 5, v4
    v_and_b32 v6, 3, v1
    v_lshl_add_u32 v4, v6, 3, v4
    v_add_u32 v4, s59, v4
    v_and_b32 v5, 1, v1
    v_mul_u32_u24 v5, 3584, v5
    v_lshl_add_u32 v5, v7, 4, v5
    s_mul_i32 s48, s36, 448
    s_add_u32 s48, s48, {ACT}
    v_and_b32 v6, 1, v7
    v_mov_b32 v12, s44
    v_mov_b32 v13, s45
    v_cmp_eq_u32 vcc, 1, v6
    s_mov_b32 s39, {SPIN}
    s_add_u32 s41, s58, {BASE}
    v_cndmask_b32 v12, v12, v13, vcc
    v_not_b32 v13, v12
    v_and_b32 v13, 0x7ff, v13
    v_and_b32 v14, 14, v1
    v_lshlrev_b32 v14, 1, v14
    v_lshl_add_u32 v15, v13, 10, v14
    v_and_b32 v14, 15, v1
    v_lshlrev_b32 v14, 1, v14
    v_lshl_add_u32 v13, v13, 10, v14
    s_waitcnt vmcnt(0)
    """)
    for s in range(7):
        k(f"ds_read_b64_tr_b16 {vr(Bf+4*s,2)}, v4 offset:{s*1024}\nds_read_b64_tr_b16 {vr(Bf+4*s+2,2)}, v4 offset:{s*1024+128}")
    k(f"""
    v_not_b32 v16, v12
    v_ashrrev_i32 v16, 31, v16
    v_or_b32 v16, 0x80000000, v16
    v_xor_b32 v16, v16, v12
    v_mul_f32 v16, {f32(-LOG2E)}, v16
    v_exp_f32 v16, v16
    s_nop 0
    v_add_f32 v16, 1.0, v16
    v_rcp_f32 v16, v16                ; sigmoid(r)
    s_waitcnt lgkmcnt(0)
    """)
    ST(16)
    k(f"""
    L_ACT_POLL:
    buffer_load_dword v14, v15, s[28:31], s41 offen sc1
    """)
    for s in range(7): k(f"buffer_load_dwordx4 {vr(Af+4*s,4)}, v5, s[28:31], s48 offen offset:{s*64} sc1")
    k("v_mov_b32 v8, 0\nv_mov_b32 v9, 0\nv_mov_b32 v10, 0\nv_mov_b32 v11, 0\ns_waitcnt vmcnt(7)\nv_mov_b32 v17, v14")
    for s in range(7):
        k(f"s_waitcnt vmcnt({6-s})\nv_mfma_f32_16x16x32_bf16 v[8:11], {vr(Af+4*s,4)}, {vr(Bf+4*s,4)}, v[8:11]")
        k(f"v_max3_u32 v17, v17, v{Af+4*s}, v{Af+4*s+1}\nv_max3_u32 v17, v17, v{Af+4*s+2}, v{Af+4*s+3}")
    k(f"""
    v_cmp_eq_u32 vcc, -1, v17
    s_sub_u32 s39, s39, 1
    s_cbranch_scc1 L_ACT_OUT
    s_nop 4
    s_cbranch_vccnz L_ACT_POLL
    L_ACT_OUT:
    """)
    ST(17)
    k(f"""
    s_lshl_b32 s42, s36, 7
    s_add_u32 s42, s42, {PX}
    v_and_b32 v4, 15, v1
    v_lshl_add_u32 v4, v4, 2, s42
    v_and_b32 v5, 31, v1
    v_lshlrev_b32 v5, 2, v5
    v_add_u32 v5, {PX}, v5
    ds_write_b32 v4, v8
    ds_write_b32 v4, v9 offset:64
    s_waitcnt lgkmcnt(0)
    s_barrier
    s_cmp_lg_u32 s36, 0
    s_cbranch_scc1 L_END
    """)
    for w in range(8): k(f"ds_read_b32 v{24+w}, v5 offset:{w*128}")
    k(f"""
    v_and_b32 v6, 1, v1
    v_lshlrev_b32 v17, 16, v14
    v_and_b32 v14, 0xffff0000, v14
    v_cmp_eq_u32 vcc, 1, v6
    s_waitcnt lgkmcnt(0)
    v_add_f32 v24, v24, v25
    v_cndmask_b32 v14, v17, v14, vcc
    """)
    for w in range(2, 8): k(f"v_add_f32 v24, v24, v{24+w}")
    k(f"""
    v_fmac_f32 v14, v24, v16
    v_cvt_pk_bf16_f32 v14, v14, v14
    buffer_store_short v14, v13, s[24:27], s58 offen
    s_endpgm
    """)
    k(f"""
    L_EVENT:
    s_cmp_eq_u32 s57, {prio}
    s_cbranch_scc0 L_EV1
    s_cmp_eq_u32 s51, 0
    s_cbranch_scc0 L_EV1
    s_setprio 0
    L_EV1:
    s_cmp_eq_u32 s57, 3
    s_cbranch_scc1 L_FILL
    s_cmp_lt_u32 s57, 5
    s_cbranch_scc1 L_BACK
    s_cmp_lt_u32 s57, 9
    s_cbranch_scc0 L_EVHI
    s_cmp_eq_u32 s57, 5
    s_cbranch_scc1 L_W0
    s_cmp_eq_u32 s57, 6
    s_cbranch_scc1 L_W1
    s_cmp_eq_u32 s57, 7
    s_cbranch_scc1 L_W2
    s_branch L_W3
    L_EVHI:
    s_cmp_eq_u32 s57, 9
    s_cbranch_scc1 L_W4
    s_cmp_eq_u32 s57, 10
    s_cbranch_scc1 L_W5
    s_cmp_eq_u32 s57, 11
    s_cbranch_scc1 L_W6
    s_cmp_eq_u32 s57, 12
    s_cbranch_scc1 L_W7
    s_cmp_eq_u32 s57, 13
    s_cbranch_scc1 L_W8
    s_cmp_eq_u32 s57, 14
    s_cbranch_scc1 L_W9
    s_branch L_BACK
    L_FILL:
    s_waitcnt vmcnt(0)
    """)
    for i in range(2, 8):
        a, b, o = (24, 25, i*8*TP) if i < 4 else (30, 31, (i-4)*8*TP)
        k(f"ds_write_b128 v{a}, {vr(STG+8*i,4)} offset:{o}\nds_write_b128 v{b}, {vr(STG+8*i+4,4)} offset:{o}")
    k(f"""
    s_cmp_lt_u32 s2, 224
    s_cbranch_scc0 L_FILL2
    s_and_b32 s46, s2, 7
    s_mul_i32 s46, s46, 28
    s_lshr_b32 s47, s2, 3
    s_add_u32 s46, s46, s47
    s_lshl_b32 s46, s46, 4
    s_mul_i32 s47, s36, {64*3584}
    s_add_u32 s46, s46, s47
    v_mul_u32_u24 v28, 3584, v1
    s_lshl_b32 s47, s36, 10
    """)
    k.srd(32, 62, 512*3584)
    k(f"s_add_u32 m0, s47, {FW}\ns_nop 0\nbuffer_load_dwordx4 v28, s[32:35], s46 offen lds")
    k.srd(32, 64, 512*3584)
    k(f"s_add_u32 m0, s47, {FW+8192}\ns_nop 0\nbuffer_load_dwordx4 v28, s[32:35], s46 offen lds")
    k(f"""
    L_FILL2:
    s_lshl_b32 s42, s36, 13
    s_add_u32 s42, s42, {WOT}
    s_waitcnt lgkmcnt(0)
    s_barrier
    s_branch L_BACK
    L_W0:
    v_lshlrev_b32 v28, 7, v1
    v_add_u32 v28, {CNTB}, v28
    s_mov_b32 s39, {SPIN}
    s_mov_b64 exec, 0xff
    L_B_POLL:
    global_load_dword v29, v28, s[72:73] sc1
    s_sub_u32 s39, s39, 1
    s_cbranch_scc1 L_B_OUT
    s_waitcnt vmcnt(0)
    v_cmp_gt_u32 vcc, 32, v29
    s_cbranch_vccnz L_B_POLL
    L_B_OUT:
    s_mov_b64 exec, -1
    """)
    for b in range(10):
        if b: k(f"L_W{b}:")
        s, q = b >> 1, b & 1
        k(f"s_add_u32 s48, s42, {s*65536 + q*4096}")
        for o in range(4): k(f"buffer_load_dwordx4 {vr(RES+32*s+16*q+4*o,4)}, v2, s[28:31], s48 offen offset:{o*1024} sc1")
        k("s_branch L_BACK")
    return k

def build(k, path):
    s = f"; @launch grid=({k.grid},1,1) block=({k.block},1,1) lds={k.lds}\n"
    s += '.amdgcn_target "amdgcn-amd-amdhsa--gfx950"\n.text\n' + k.text() + '.section .rodata,"a"\n.p2align 6\n' + k.desc()
    open(path, 'w').write(s)
    import hz
    print(path, 'hazards:', hz.check(s))
if __name__ == '__main__':
    build(fused(), 'v2.s')
    import stamp
    build(stamp.instrument(fused(stamps=True), 0), 'v2t.s')
```

```python
import re
STAMP = 0x800000
SB = 80; NS = 22
def instrument(k, kidx, cyc=False):
    out = []
    ins = 's_memtime' if cyc else 's_memrealtime'
    def stamp(slot):
        return [f"    {ins} s[76:77]", "    s_waitcnt lgkmcnt(0)", f"    s_mov_b32 s{SB+slot}, s76"]
    out += [f"    s_mov_b32 s{SB+i}, 0" for i in range(NS)]
    out += ["    s_mov_b32 s78, s2", "    v_readfirstlane_b32 s79, v0"] + stamp(0)
    n = 0
    for l in k.L:
        m = re.match(r'\s*; STAMP (\d+)', l)
        if m: out += stamp(int(m.group(1))); continue
        if l.strip() == 's_endpgm':
            n += 1
            out += ["    s_waitcnt vmcnt(0)"] + stamp(NS - 1)
            out += ["    s_cmp_ge_u32 s78, 256", f"    s_cbranch_scc1 SE_{kidx}_{n}", "    s_load_dwordx2 s[74:75], s[0:1], 96",
                    "    s_mov_b64 exec, 1", f"    s_lshl_b32 s78, s78, 10", "    s_lshl_b32 s79, s79, 1", "    s_add_u32 s78, s78, s79", f"    s_add_u32 s78, s78, {STAMP + kidx*262144}", "    v_mov_b32 v0, s78", "    s_waitcnt lgkmcnt(0)"]
            for i in range(NS): out += [f"    v_mov_b32 v1, s{SB+i}", f"    global_store_dword v0, v1, s[74:75] offset:{4*i}"]
            out += [f"SE_{kidx}_{n}:", "    s_endpgm"]
        else: out.append(l)
    k.L = out; k.sgpr = 102
    return k
def addafter(k, pat, slot, nth=0):
    idx = [i for i, l in enumerate(k.L) if pat in l][nth]
    k.L.insert(idx + 1, f'    ; STAMP {slot}')

def instrument_dbg(k, slots):
    out = []
    def stamp(slot):
        return ["    s_memrealtime s[76:77]", "    s_waitcnt lgkmcnt(0)", f"    s_mov_b32 s{SB+slot}, s76"]
    out += [f"    s_mov_b32 s{SB+i}, 0" for i in range(NS)]
    out += ["    s_mov_b32 s78, s2"] + stamp(0)
    n = 0
    for l in k.L:
        m = re.match(r'\s*; STAMP (\d+)', l)
        if m:
            if int(m.group(1)) in slots: out += stamp(int(m.group(1)))
            continue
        if l.strip() == 's_endpgm':
            n += 1
            out += ["    s_waitcnt vmcnt(0)"] + stamp(NS - 1)
            out += ["    s_cmp_ge_u32 s78, 256", f"    s_cbranch_scc1 SE_{n}", "    s_load_dwordx2 s[74:75], s[0:1], 88", "    s_mov_b64 exec, -1",
                    "    v_mbcnt_lo_u32_b32 v0, -1, 0", "    v_lshlrev_b32 v0, 2, v0", f"    s_not_b32 s{SB}, s{SB}", "    v_mov_b32 v1, 0", f"    v_writelane_b32 v1, s{SB}, 1"]
            for i, sl in enumerate(slots): out += [f"    v_writelane_b32 v1, s{SB+sl}, {2+i}"]
            out += ["    s_mov_b64 exec, 0xfffe", "    s_waitcnt lgkmcnt(0)", "    global_atomic_umax v0, v1, s[74:75] sc1", f"SE_{n}:", "    s_endpgm"]
        else: out.append(l)
    k.L = out; k.sgpr = 102
    return k
```

```python
import sys, struct, math
from gen1 import Kern, vr, f32, allreduce_halves, top2, NAME
KVF = 0; WOT = 0x20000; OB = WOT + 0x80000; HN = OB + 0x200000; STAT = HN + 0x200000
KEY2 = STAT + 0x4000; ACT = KEY2 + 0x2000; CNTB = ACT + 0x8000; WS_SIZE = CNTB + 0x1000
CSCALE = 0.25 * math.log2(math.e)
OFF = 96.0
TP = 2080
SPIN = 20000
LSPIN = 2000000
LOG2E = math.log2(math.e)

def fused(prio=10, stamps=False, codepf=True, fill=3, wbase=(4, 1), free=(13, 9), depth=4, pre_late=8):
    k = Kern(NAME + '_kernel', 256, 512, 163840, 256, sgpr=74)
    def ST(n):
        if stamps: k.L.append(f'    ; STAMP {n}')
    XS, WSL, WKV, EX = 0, 65536, 131072, 147456
    X2 = EX + 8192; FLG = X2 + 256; STX = FLG + 256; CSX = STX + 512
    FW = 141440; MISC = 159872; AX = 133120
    Q, KF, VL, VH, IDX, AK, AV, C, SA, SB, O, STG = 4, 8, 12, 16, 20, 21, 22, 32, 48, 64, 80, 96
    ACC = 144
    def chk(base, n, t):
        k(f"v_max3_u32 v{t}, v{base}, v{base+1}, v{base+2}")
        for i in range(3, n - 1, 2): k(f"v_max3_u32 v{t}, v{t}, v{base+i}, v{base+i+1}")
        k(f"v_max_u32 v{t}, v{t}, v{base+n-1}\nv_cmp_eq_u32 vcc, -1, v{t}")
    k(f"""
    s_cmp_ge_u32 s2, 256
    s_cbranch_scc1 L_END
    s_load_dwordx8 s[4:11], s[0:1], 0
    s_load_dwordx2 s[72:73], s[0:1], 96
    s_load_dwordx4 s[68:71], s[0:1], 80
    s_load_dwordx2 s[12:13], s[0:1], 32
    s_load_dwordx8 s[60:67], s[0:1], 48
    v_lshrrev_b32 v1, 6, v0
    s_and_b32 s37, s2, 7
    v_readfirstlane_b32 s36, v1
    s_lshl_b32 s37, s37, 2
    s_bfe_u32 s39, s2, 0x20003
    s_add_u32 s37, s37, s39           ; g
    s_lshr_b32 s38, s2, 5             ; j
    v_and_b32 v1, 63, v0              ; lane
    v_lshlrev_b32 v2, 4, v1           ; lane*16
    s_lshl_b32 s41, s37, 16           ; g*65536
    s_and_b32 s49, s36, 1             ; th
    s_bfe_u32 s50, s36, 0x10001       ; hp
    s_lshr_b32 s51, s36, 2
    v_mov_b32 v10, {FLG}
    v_mov_b32 v31, 0
    s_cmp_ge_u32 s36, 4
    s_cbranch_scc1 L_HELP
    """)
    k(f"""
    v_and_b32 v12, 15, v1
    s_lshr_b32 s45, s38, 1
    s_lshl_b32 s45, s45, 14
    s_lshl_b32 s46, s36, 8
    s_add_u32 s45, s45, s46
    s_add_u32 s45, s45, s41
    v_lshrrev_b32 v13, 4, v1
    v_lshlrev_b32 v14, 4, v13
    v_lshl_add_u32 v12, v12, 10, v14
    s_lshl_b32 s46, s36, 12
    s_add_u32 s47, s46, {WKV}
    s_mov_b32 m0, s47
    s_mov_b32 s18, 2097152
    s_mov_b32 s19, 0x00020000
    s_mov_b32 s26, 16384
    s_mov_b32 s27, 0x00020000
    s_bitcmp1_b32 s38, 0
    s_waitcnt lgkmcnt(0)
    s_cselect_b32 s24, s10, s8
    s_cselect_b32 s25, s11, s9
    s_mov_b32 s16, s4
    s_and_b32 s17, s5, 0xffff
    s_and_b32 s25, s25, 0xffff
    """)
    for st in range(4):
        k(f"buffer_load_dwordx4 {vr(64+4*st,4)}, v12, s[16:19], s45 offen offset:{st*64}")
        k(f"buffer_load_dwordx4 v2, s[24:27], s46 offen offset:{st*1024} lds")
    k("s_barrier")
    k.srd(28, 72, WS_SIZE)
    k(f"""
    s_mov_b32 s40, 0x3f803f80
    s_lshl_b32 s52, s50, 1
    s_add_u32 s52, s52, s51
    s_lshl_b32 s53, s37, 3
    s_add_u32 s53, s53, s38           ; octet
    s_lshl_b32 s54, s53, 3
    s_add_u32 s54, s54, s36
    s_lshl_b32 s55, s54, 10
    s_lshl_b32 s56, s49, 15
    s_add_u32 s56, s56, s41
    s_lshl_b32 s39, s38, 10
    s_add_u32 s56, s56, s39
    s_lshl_b32 s39, s52, 8
    s_add_u32 s56, s56, s39
    s_add_u32 s56, s56, {OB}
    v_bfe_u32 v12, v1, 3, 2
    v_lshlrev_b32 v3, 13, v12
    v_lshrrev_b32 v12, 5, v1
    v_lshl_add_u32 v3, v12, 7, v3
    v_and_b32 v12, 7, v1
    v_lshl_add_u32 v3, v12, 4, v3
    v_bfe_u32 v14, v1, 2, 2
    v_lshl_add_u32 v12, v13, 3, v14
    v_and_b32 v15, 3, v1
    v_lshlrev_b32 v15, 3, v15
    v_lshl_add_u32 v12, v12, 5, v15
    v_add_u32 v30, s47, v12
    v_and_b32 v12, 31, v1
    s_lshl_b32 s39, s49, 5
    v_add_u32 v12, s39, v12           ; t
    v_bfe_u32 v13, v12, 1, 3
    v_lshrrev_b32 v15, 5, v1          ; h
    v_xor_b32 v13, v13, v15
    v_lshlrev_b32 v13, 4, v13
    v_lshlrev_b32 v12, 7, v12
    v_add_u32 v4, v12, v13
    v_xor_b32 v5, 32, v4
    v_xor_b32 v6, 64, v4
    v_xor_b32 v7, 0x60, v4
    v_lshl_add_u32 v13, v15, 3, v14   ; row = 8h + r
    v_lshrrev_b32 v14, 1, v14
    v_lshlrev_b32 v14, 2, v14         ; sw
    v_bfe_u32 v15, v1, 4, 1
    v_lshlrev_b32 v15, 1, v15
    v_bfe_u32 v8, v1, 1, 1
    v_add_u32 v15, v15, v8
    s_lshl_b32 s48, s50, 2
    v_add_u32 v15, s48, v15
    v_xor_b32 v15, v15, v14
    v_lshlrev_b32 v15, 4, v15
    v_lshl_add_u32 v8, v13, 7, v15
    v_and_b32 v15, 1, v1
    v_lshl_add_u32 v8, v15, 3, v8
    v_add_u32 v8, {WSL}, v8
    v_mov_b32 v9, 0
    v_mov_b32 v11, 0
    s_lshl_b32 s46, s36, 11
    s_add_u32 s46, s46, {EX}
    v_lshl_add_u32 v12, v1, 5, s46
    v_mov_b32 v29, 1
    """)
    for i in range(16): k(f"v_mov_b32 v{ACC+i}, 0")
    for i in range(8): k(f"v_mov_b32 v{96+i}, 0")
    k("s_waitcnt vmcnt(0)")
    ST(1)
    for st in range(4):
        k(f"ds_read_b64_tr_b16 {vr(80+4*st,2)}, v30 offset:{st*1024}\nds_read_b64_tr_b16 {vr(82+4*st,2)}, v30 offset:{st*1024+128}")
    for i in range(16): k(f"v_dot2c_f32_bf16 v100, s40, v{64+i}\nv_dot2c_f32_bf16 v101, v{64+i}, v{64+i}")
    k("s_waitcnt lgkmcnt(0)\ns_bitcmp1_b32 s38, 0\ns_cbranch_scc1 L_VM")
    for st in range(4): k(f"v_mfma_f32_16x16x32_bf16 v[96:99], {vr(80+4*st,4)}, {vr(64+4*st,4)}, v[96:99]")
    k("s_branch L_KM\nL_VM:")
    for st in range(4): k(f"v_mfma_f32_16x16x32_bf16 v[96:99], {vr(64+4*st,4)}, {vr(80+4*st,4)}, v[96:99]")
    k("L_KM:")
    for i in range(16): k(f"v_dot2c_f32_bf16 v102, s40, v{80+i}")
    k(f"""
    s_nop 2
    ds_write_b128 v12, v[96:99]
    ds_write_b128 v12, v[100:103] offset:16
    s_mov_b64 exec, 1
    ds_add_u32 v10, v29 offset:12
    s_mov_b64 exec, -1
    """)
    def qwait(tag):
        k(f"""
        s_cmp_lt_u32 s57, s58
        s_cbranch_scc1 L_QGO{tag}
        L_QWAIT{tag}:
        ds_read_b64 v[12:13], v10
        s_sub_u32 s39, s39, 1
        s_cbranch_scc1 L_QGO{tag}
        s_waitcnt lgkmcnt(0)
        v_min_u32 v12, v12, v13
        s_nop 0
        v_readfirstlane_b32 s58, v12
        s_cmp_lt_u32 s57, s58
        s_cbranch_scc0 L_QWAIT{tag}
        L_QGO{tag}:
        s_add_u32 s57, s57, 1
        """)
    def qreads(X, W, off):
        for sp in range(4):
            k(f"ds_read_b128 {vr(X+4*sp,4)}, v{4+sp} offset:{off}")
            k(f"ds_read_b64_tr_b16 {vr(W+4*sp,2)}, v8 offset:{off+sp*2048}")
            k(f"ds_read_b64_tr_b16 {vr(W+2+4*sp,2)}, v8 offset:{off+sp*2048+512}")
    def qcomp(X, W, tag):
        for sp in range(4): k(f"v_mfma_f32_32x32x16_bf16 {vr(ACC,16)}, {vr(W+4*sp,4)}, {vr(X+4*sp,4)}, {vr(ACC,16)}")
        k(f"s_cmp_eq_u32 s50, 0\ns_cbranch_scc0 L_QSQ{tag}")
        for i in range(16): k(f"v_dot2c_f32_bf16 v9, s40, v{X+i}")
        k(f"s_branch L_QCS{tag}\nL_QSQ{tag}:")
        for i in range(16): k(f"v_dot2c_f32_bf16 v9, v{X+i}, v{X+i}")
        k(f"L_QCS{tag}:\ns_cmp_eq_u32 s49, {tag}\ns_cbranch_scc0 L_QNX{tag}")
        for i in range(16): k(f"v_dot2c_f32_bf16 v11, s40, v{W+i}")
        k(f"L_QNX{tag}:")
    k(f"s_mov_b32 s57, 0\ns_mov_b32 s58, 0\ns_mov_b32 s39, {LSPIN}")
    qwait('P'); qreads(32, 48, 0)
    k("L_QLOOP:")
    qwait('A'); k("s_waitcnt lgkmcnt(0)"); qreads(64, 80, 8192)
    for i in range(5): k(f"v_add_u32 v{4+i}, 16384, v{4+i}")
    qcomp(32, 48, 0)
    k("s_cmp_eq_u32 s57, 8\ns_cbranch_scc1 L_QLAST")
    qwait('B'); k("s_waitcnt lgkmcnt(0)"); qreads(32, 48, 0)
    k("s_branch L_QC1\nL_QLAST:\ns_waitcnt lgkmcnt(0)\ns_mov_b32 s57, 9\nL_QC1:")
    qcomp(64, 80, 1)
    k(f"""
    s_cmp_lt_u32 s57, 9
    s_cbranch_scc1 L_QLOOP
    s_nop 0
    v_mov_b32 v12, v9
    v_mov_b32 v14, v11
    s_lshl_b32 s46, s36, 12
    s_add_u32 s46, s46, {WKV + 2048}
    v_permlane32_swap_b32 v9, v12
    v_permlane32_swap_b32 v11, v14
    v_add_f32 v9, v9, v12
    v_add_f32 v11, v11, v14
    v_lshl_add_u32 v12, v1, 5, s46
    ds_write_b128 v12, {vr(ACC+8,4)}
    ds_write_b128 v12, {vr(ACC+12,4)} offset:16
    v_and_b32 v13, 31, v1
    s_lshl_b32 s47, s36, 7
    s_add_u32 s47, s47, {STX}
    v_lshl_add_u32 v14, v13, 2, s47
    ds_write_b32 v14, v9
    ds_write_b32 v14, v11 offset:512
    s_branch L_JOIN
    """)
    k(f"""
    L_HELP:
    s_lshl_b32 s52, s50, 1
    s_add_u32 s52, s52, s51
    s_lshl_b32 s53, s37, 3
    s_add_u32 s53, s53, s38           ; octet
    s_lshl_b32 s54, s53, 3
    s_add_u32 s54, s54, s36
    s_lshl_b32 s55, s54, 10
    s_lshl_b32 s56, s49, 15
    s_add_u32 s56, s56, s41
    s_lshl_b32 s39, s38, 10
    s_add_u32 s56, s56, s39
    s_lshl_b32 s39, s52, 8
    s_add_u32 s56, s56, s39
    s_add_u32 s56, s56, {OB}
    v_bfe_u32 v12, v1, 3, 2
    v_lshlrev_b32 v3, 13, v12
    v_lshrrev_b32 v12, 5, v1
    v_lshl_add_u32 v3, v12, 7, v3
    v_and_b32 v12, 7, v1
    v_lshl_add_u32 v3, v12, 4, v3
    v_mov_b32 v24, -1
    v_mov_b32 v25, -1
    v_mov_b32 v26, -1
    v_mov_b32 v27, -1
    v_mov_b32 v16, 0
    v_mov_b32 v17, 0
    v_mov_b32 v18, 0
    v_mov_b32 v19, 0
    ds_write_b128 v10, v[16:19]
    v_lshrrev_b32 v12, 3, v1
    v_and_b32 v13, 7, v1
    v_lshrrev_b32 v14, 1, v12
    v_xor_b32 v15, v14, v13
    v_lshlrev_b32 v15, 4, v15
    v_lshl_add_u32 v28, v12, 10, v15
    v_xor_b32 v29, 64, v28
    v_add_u32 v29, 8192, v29
    s_cmp_eq_u32 s36, 5
    s_cbranch_scc0 L_H1
    v_and_b32 v14, 1, v14
    v_lshlrev_b32 v14, 2, v14
    v_xor_b32 v15, v14, v13
    v_lshlrev_b32 v15, 4, v15
    v_lshl_add_u32 v28, v12, 10, v15  ; W voffset
    v_add_u32 v29, 8192, v28
    L_H1:
    s_waitcnt lgkmcnt(0)
    """)
    k.srd(28, 72, WS_SIZE); k.srd(16, 4, 2097152)
    k(f"""
    s_cmp_lt_u32 s36, 6
    s_cbranch_scc1 L_ISSUE
    s_cmp_eq_u32 s36, 7
    s_cbranch_scc0 L_H6
    s_cmp_lt_u32 s2, 16
    s_cbranch_scc0 L_H7B
    s_lshl_b32 s39, s2, 13
    s_add_u32 s46, s39, 4096
    buffer_store_dwordx4 v[24:27], v2, s[28:31], s39 offen sc1
    buffer_store_dwordx4 v[24:27], v2, s[28:31], s39 offen offset:1024 sc1
    buffer_store_dwordx4 v[24:27], v2, s[28:31], s39 offen offset:2048 sc1
    buffer_store_dwordx4 v[24:27], v2, s[28:31], s39 offen offset:3072 sc1
    buffer_store_dwordx4 v[24:27], v2, s[28:31], s46 offen sc1
    buffer_store_dwordx4 v[24:27], v2, s[28:31], s46 offen offset:1024 sc1
    buffer_store_dwordx4 v[24:27], v2, s[28:31], s46 offen offset:2048 sc1
    buffer_store_dwordx4 v[24:27], v2, s[28:31], s46 offen offset:3072 sc1
    s_cmp_lg_u32 s2, 0
    s_cbranch_scc1 L_H7A
    s_mov_b32 s39, {CNTB}
    buffer_store_dwordx4 v[16:19], v2, s[28:31], s39 offen sc1
    L_H7A:
    s_setprio 3
    s_barrier
    v_mov_b32 v12, 1
    v_mov_b32 v13, 128
    s_mov_b64 exec, 1
    s_waitcnt vmcnt(0)
    global_atomic_add v14, v31, v12, s[70:71] sc0 sc1
    s_waitcnt vmcnt(0)
    v_readfirstlane_b32 s39, v14
    s_cmp_eq_u32 s39, 15
    s_cbranch_scc0 L_H7C
    global_store_dword v13, v12, s[70:71] sc1
    L_H7C:
    s_mov_b64 exec, -1
    s_setprio 0
    s_branch L_HWAIT0
    L_H7B:
    """)
    if codepf:
        k(f"""
        s_cmp_lt_u32 s2, 48
        s_cbranch_scc0 L_H6
        s_getpc_b64 s[58:59]
        L_PC:
        s_sub_u32 s58, s58, L_PC-{k.name}
        s_subb_u32 s59, s59, 0
        v_mov_b32 v12, v2
        """)
        for i in range(3):
            for o in range(4): k(f"global_load_dwordx4 v[128:131], v12, s[58:59] offset:{o*1024}")
            k("v_add_u32 v12, 4096, v12")
    k(f"""
    L_H6:
    s_barrier
    s_cmp_eq_u32 s36, 6
    s_cbranch_scc0 L_HWAIT0
    """)
    k(f"""
    L_FIN:
    v_mov_b32 v104, 128
    global_load_dword v105, v104, s[70:71] sc1
    v_lshlrev_b32 v12, 5, v1
    v_add_u32 v12, {EX}, v12
    s_mov_b32 s39, {LSPIN}
    L_KC_POLL:
    ds_read_b32 v13, v10 offset:12
    s_sub_u32 s39, s39, 1
    s_cbranch_scc1 L_KC_OUT
    s_waitcnt lgkmcnt(0)
    v_cmp_gt_u32 vcc, 4, v13
    s_cbranch_vccnz L_KC_POLL
    L_KC_OUT:
    """)
    k("ds_read_b128 v[96:99], v12 offset:6144\nds_read_b128 v[100:103], v12 offset:6160")
    for a in range(3):
        k(f"ds_read_b128 {vr(64+8*a,4)}, v12 offset:{a*2048}\nds_read_b128 {vr(68+8*a,4)}, v12 offset:{a*2048+16}")
    for a in range(3):
        k(f"s_waitcnt lgkmcnt({4-2*a})")
        for i in range(7): k(f"v_add_f32 v{96+i}, v{96+i}, v{64+8*a+i}")
    for op in ('v_permlane16_swap_b32', 'v_permlane32_swap_b32'):
        k("v_mov_b32 v64, v100\nv_mov_b32 v65, v101\nv_mov_b32 v66, v102\ns_nop 0")
        k(f"{op} v100, v64\n{op} v101, v65\n{op} v102, v66")
        k("v_add_f32 v100, v100, v64\nv_add_f32 v101, v101, v65\nv_add_f32 v102, v102, v66")
    k(f"""
    v_mul_f32 v100, {f32(1/512)}, v100
    v_mul_f32 v101, {f32(1/512)}, v101
    v_fma_f32 v101, -v100, v100, v101
    v_add_f32 v101, {f32(1e-5)}, v101
    v_rsq_f32 v101, v101
    v_and_b32 v12, 15, v1
    v_lshlrev_b32 v13, 2, v12
    v_add_u32 v13, {X2}, v13
    ds_write_b32 v13, v100
    ds_write_b32 v13, v101 offset:64
    ds_write_b32 v13, v102 offset:128
    v_lshrrev_b32 v14, 4, v1
    v_lshlrev_b32 v13, 4, v14
    v_add_u32 v13, {X2}, v13
    ds_read_b128 v[64:67], v13
    ds_read_b128 v[68:71], v13 offset:64
    ds_read_b128 v[72:75], v13 offset:128
    s_lshl_b32 s46, s37, 1
    s_lshr_b32 s47, s38, 2
    s_add_u32 s46, s46, s47
    s_lshl_b32 s46, s46, 11
    s_bfe_u32 s47, s38, 0x10001
    v_and_b32 v13, 1, v14
    v_lshrrev_b32 v14, 1, v14
    s_bitcmp1_b32 s38, 0
    s_cbranch_scc1 L_FV
    s_lshl_b32 s47, s47, 8
    v_lshlrev_b32 v13, 9, v13
    v_lshl_add_u32 v13, v12, 4, v13
    v_lshl_add_u32 v13, v14, 3, v13
    s_waitcnt lgkmcnt(0)
    """)
    for r in range(4): k(f"v_fma_f32 v{96+r}, -v100, v{72+r}, v{96+r}")
    for r in range(4): k(f"v_mul_f32 v{96+r}, v{96+r}, v101")
    k(f"""
    s_branch L_FS
    L_FV:
    s_lshl_b32 s47, s47, 9
    s_add_u32 s47, s47, 1024
    v_lshlrev_b32 v13, 3, v13
    v_lshl_add_u32 v13, v12, 4, v13
    v_lshl_add_u32 v13, v14, 8, v13
    s_waitcnt lgkmcnt(0)
    """)
    for r in range(4): k(f"v_fma_f32 v{96+r}, -v{64+r}, v102, v{96+r}")
    for r in range(4): k(f"v_mul_f32 v{96+r}, v{96+r}, v{68+r}")
    k(f"""
    L_FS:
    s_add_u32 s46, s46, s47
    v_cvt_pk_bf16_f32 v96, v96, v97
    v_cvt_pk_bf16_f32 v97, v98, v99
    s_mov_b32 s39, {SPIN}
    v_min_u32 v96, -2, v96
    v_min_u32 v97, -2, v97
    L_F0_POLL:
    s_waitcnt vmcnt(0)
    v_cmp_eq_u32 vcc, 1, v105
    s_sub_u32 s39, s39, 1
    s_cbranch_scc1 L_F0_OUT
    s_cbranch_vccnz L_F0_OUT
    global_load_dword v105, v104, s[70:71] sc1
    s_branch L_F0_POLL
    L_F0_OUT:
    buffer_store_dwordx2 v[96:97], v13, s[28:31], s46 offen sc1
    v_mov_b32 v13, 8
    ds_write_b32 v10, v13 offset:8    ; F0 seen
    """)
    ST(2)
    k("s_branch L_HWAIT0")
    k(f"""
    L_ISSUE:
    s_mov_b32 s20, s16
    s_mov_b32 s21, s17
    s_mov_b32 s22, 2097152
    s_mov_b32 s23, 0x00020000
    s_mov_b32 s42, s41
    s_mov_b32 s43, 128
    s_mov_b32 s44, {XS}
    s_cmp_eq_u32 s36, 4
    s_cbranch_scc1 L_IS1
    s_mov_b32 s20, s6
    s_and_b32 s21, s7, 0xffff
    s_mov_b32 s22, 524288
    s_lshl_b32 s42, s38, 7
    s_mov_b32 s43, 65536
    s_mov_b32 s44, {WSL}
    v_add_u32 v10, 4, v10
    L_IS1:
    s_mov_b32 s57, 0
    v_mov_b32 v12, 1
    s_barrier
    L_ISL:
    s_cmp_lt_u32 s57, {depth}
    s_cbranch_scc1 L_IS2
    s_waitcnt vmcnt({8*(depth-1)})
    ds_write_b32 v10, v12
    v_add_u32 v12, 1, v12
    L_IS2:
    """)
    for gi in range(0, 8, 2):
        k(f"s_add_u32 m0, s44, {gi*1024}\ns_add_u32 s48, s42, {gi*8192}\nbuffer_load_dwordx4 v28, s[20:23], s48 offen lds")
        k(f"s_add_u32 m0, s44, {gi*1024+1024}\ns_nop 0\nbuffer_load_dwordx4 v29, s[20:23], s48 offen lds")
    k(f"""
    s_add_u32 s42, s42, s43
    s_add_u32 s44, s44, 8192
    s_add_u32 s57, s57, 1
    s_cmp_lt_u32 s57, 8
    s_cbranch_scc1 L_ISL
    """)
    k("s_cmp_eq_u32 s36, 4\ns_cbranch_scc0 L_X5")
    k.srd(32, 12, 524288)
    k(f"""
    s_and_b32 s46, s2, 31
    s_lshl_b32 s46, s46, 5
    s_lshl_b32 s47, s38, 16
    s_add_u32 s46, s46, s47
    v_and_b32 v28, 15, v1
    v_lshlrev_b32 v28, 1, v28
    v_lshrrev_b32 v29, 4, v1
    v_lshl_add_u32 v28, v29, 13, v28
    """)
    for e in range(16):
        row = 32*(e>>3) + 4*((e>>1)&1) + 2*((e>>2)&1) + (e&1)
        k(f"s_add_u32 s47, s46, {(row & ~3)*1024}")
        k(f"buffer_load_ushort v{64+e}, v28, s[32:35], s47 offen offset:{(row&3)*1024}")
    k("s_branch L_X6\nL_X5:")
    k(f"s_lshl_b32 s46, s38, 10\ns_add_u32 s46, s46, s41\ns_add_u32 s46, s46, {OB}\ns_lshl_b32 s47, s53, 13\ns_add_u32 s47, s47, {HN}")
    for i in range(8):
        k(f"buffer_store_dwordx4 v[24:27], v2, s[28:31], s46 offen sc1\nbuffer_store_dwordx4 v[24:27], v2, s[28:31], s47 offen sc1")
        if i < 7: k("s_add_u32 s46, s46, 8192\ns_add_u32 s47, s47, 1024")
    k("L_X6:")
    for d in range(depth - 1, -1, -1):
        k(f"s_waitcnt vmcnt({8*d+16})\nds_write_b32 v10, v12\nv_add_u32 v12, 1, v12")
    k(f"""
    s_cmp_eq_u32 s36, 4
    s_cbranch_scc0 L_X7
    s_lshl_b32 s47, s2, 5
    s_add_u32 s47, s47, {KEY2}
    s_and_b32 s46, s2, 7
    s_mul_i32 s46, s46, 28
    s_lshr_b32 s48, s2, 3
    s_add_u32 s46, s46, s48
    s_lshl_b32 s46, s46, 7
    s_add_u32 s46, s46, {ACT}
    s_lshl_b32 s39, s53, 6
    s_add_u32 s39, s39, {STAT}
    s_mov_b64 exec, 15
    buffer_store_dwordx4 v[24:27], v2, s[28:31], s39 offen sc1
    s_mov_b64 exec, 1
    buffer_store_dwordx2 v[24:25], v2, s[28:31], s47 offen sc1
    s_cmp_ge_u32 s48, 28
    s_cbranch_scc1 L_NOS6B
    s_mov_b64 exec, 3
    buffer_store_dwordx4 v[24:27], v2, s[28:31], s46 offen sc1
    L_NOS6B:
    s_mov_b64 exec, -1
    s_waitcnt vmcnt(2)
    """)
    for i in range(8): k(f"v_lshl_or_b32 v{80+i}, v{65+2*i}, 16, v{64+2*i}")
    k(f"""
    s_lshl_b32 s46, s2, 11
    s_add_u32 s46, s46, {WOT}
    buffer_store_dwordx4 v[80:83], v2, s[28:31], s46 offen sc1
    buffer_store_dwordx4 v[84:87], v2, s[28:31], s46 offen offset:1024 sc1
    L_X7:
    """)
    k(f"""
    v_mov_b32 v10, {FLG}
    L_HWAIT0:
    L_JOIN:
    s_mov_b32 s39, {LSPIN}
    L_HWAIT:
    ds_read_b96 v[12:14], v10
    s_sub_u32 s39, s39, 1
    s_cbranch_scc1 L_HGO
    s_waitcnt lgkmcnt(0)
    v_min3_u32 v12, v12, v13, v14
    v_cmp_gt_u32 vcc, 8, v12
    s_cbranch_vccnz L_HWAIT
    L_HGO:
    s_lshl_b32 s47, s36, 11
    v_add_u32 v23, s47, v2
    s_mov_b32 s47, 16384
    buffer_load_dwordx4 v[96:99], v23, s[28:31], 0 offen sc1
    buffer_load_dwordx4 v[100:103], v23, s[28:31], 0 offen offset:1024 sc1
    buffer_load_dwordx4 v[104:107], v23, s[28:31], s47 offen sc1
    buffer_load_dwordx4 v[108:111], v23, s[28:31], s47 offen offset:1024 sc1
    v_and_b32 v27, 31, v1             ; d
    v_lshrrev_b32 v26, 5, v1          ; h
    s_lshl_b32 s46, s49, 7
    s_add_u32 s46, s46, {STX}
    v_lshl_add_u32 v14, v27, 2, s46
    s_lshl_b32 s46, s50, 8
    s_lshl_b32 s47, s51, 6
    s_add_u32 s46, s46, s47
    s_add_u32 s46, s46, {CSX}
    v_lshl_add_u32 v13, v26, 4, s46
    s_and_b32 s46, s36, 3
    s_lshl_b32 s46, s46, 12
    s_add_u32 s46, s46, {WKV + 2048}
    v_lshl_add_u32 v12, v1, 5, s46
    s_waitcnt lgkmcnt(0)
    s_barrier
    """)
    ST(18)
    k(f"""
    ds_read_b32 v16, v14
    ds_read_b32 v18, v14 offset:256
    ds_read_b128 v[32:35], v13
    ds_read_b128 v[36:39], v13 offset:32
    ds_read_b128 v[40:43], v13 offset:128
    ds_read_b128 v[44:47], v13 offset:160
    s_cmp_lt_u32 s36, 4
    s_cbranch_scc1 L_NOQX
    ds_read_b128 {vr(ACC,4)}, v12
    ds_read_b128 {vr(ACC+4,4)}, v12 offset:16
    L_NOQX:
    s_mul_i32 s47, s36, {TP}
    v_add_u32 v24, s47, v2
    v_mul_u32_u24 v25, 528, v26
    v_lshl_add_u32 v25, v27, 4, v25
    s_add_u32 s48, s47, 1024
    v_add_u32 v25, s48, v25
    v_bfe_u32 v28, v1, 1, 3
    v_mul_u32_u24 v28, {8*TP}, v28
    v_and_b32 v29, 1, v1
    v_mul_u32_u24 v29, 528, v29
    s_add_u32 s48, s47, 1536
    v_add3_u32 v28, v28, v29, s48
    v_mov_b32 v48, 0x3f803f80
    v_mov_b32 v49, 0x3f803f80
    v_mov_b32 v50, 0x3f803f80
    v_mov_b32 v51, 0x3f803f80
    ds_write_b128 v28, v[48:51]
    v_lshlrev_b32 v26, 8, v26
    v_lshl_add_u32 v26, v27, 4, v26
    v_mov_b32 v29, 512
    v_cmp_gt_u32 vcc, 16, v27
    v_mov_b32 v{IDX}, 0xdddddddd
    v_mov_b32 v28, 0x100000
    v_cndmask_b32 v26, v29, v26, vcc
    v_cmp_lt_u32 vcc, 16, v27
    v_add_u32 v26, 1024, v26
    s_waitcnt lgkmcnt(1)
    v_cndmask_b32 v26, v26, v28, vcc
    v_mul_f32 v16, {f32(1/512)}, v16
    v_mul_f32 v18, {f32(1/512)}, v18
    v_fma_f32 v18, -v16, v16, v18
    v_add_f32 v18, {f32(1e-5)}, v18
    v_rsq_f32 v18, v18
    """)
    for i in range(8): k(f"v_add_f32 v{32+i}, v{32+i}, v{40+i}")
    k(f"v_mul_f32 v18, {f32(CSCALE)}, v18")
    for i in range(8): k(f"v_fma_f32 v{ACC+i}, -v16, v{32+i}, v{ACC+i}")
    for i in range(8): k(f"v_mul_f32 v{ACC+i}, v{ACC+i}, v18")
    for i in range(4): k(f"v_cvt_pk_bf16_f32 v{Q+i}, v{ACC+2*i}, v{ACC+2*i+1}")
    ST(3)
    k(f"s_mov_b32 s39, {SPIN}\nL_KV_POLL:\ns_waitcnt vmcnt(0)")
    chk(STG, 16, 29)
    k(f"""
    s_sub_u32 s39, s39, 1
    s_cbranch_scc1 L_KV_OUT
    s_cbranch_vccz L_KV_OUT
    s_mov_b32 s47, 16384
    buffer_load_dwordx4 v[96:99], v23, s[28:31], 0 offen sc1
    buffer_load_dwordx4 v[100:103], v23, s[28:31], 0 offen offset:1024 sc1
    buffer_load_dwordx4 v[104:107], v23, s[28:31], s47 offen sc1
    buffer_load_dwordx4 v[108:111], v23, s[28:31], s47 offen offset:1024 sc1
    s_branch L_KV_POLL
    L_KV_OUT:
    """)
    ST(4)
    for i in range(2):
        k(f"ds_write_b128 v24, {vr(STG+8*i,4)} offset:{i*8*TP}\nds_write_b128 v25, {vr(STG+8*i+4,4)} offset:{i*8*TP}")
    k(f"""
    s_lshl_b32 s42, s36, 13
    s_add_u32 s42, s42, {WOT}
    s_waitcnt lgkmcnt(0)
    s_barrier
    s_cmp_eq_u32 s51, 0
    s_cbranch_scc0 L_LAG
    s_setprio 2
    s_mov_b32 s58, {wbase[0]}
    s_mov_b32 s59, {free[0]}
    L_START:
    ds_read_b128 {vr(KF,4)}, v2
    ds_read_b128 {vr(VL,4)}, v2 offset:{TP}
    v_mov_b32 v{AK}, v2
    v_mov_b32 v{AV}, v26
    ds_read_b128 {vr(VH,4)}, v26
    s_waitcnt lgkmcnt(2)
    v_mfma_f32_32x32x16_bf16 {vr(SA,16)}, {vr(KF,4)}, {vr(Q,4)}, 0
    s_waitcnt lgkmcnt(1)
    v_mfma_f32_32x32x16_bf16 {vr(SB,16)}, {vr(VL,4)}, {vr(Q,4)}, 0
    """)
    for i in range(16): k(f"v_mov_b32 v{O+i}, 0")
    k(f"v_max_f32 v28, v{SA}, v{SA+1}")
    for i in range(1, 16): k(f"v_max3_f32 v28, v28, v{SA+2*i}, v{SA+2*i+1}")
    allreduce_halves(k, 28, 29, 'v_max_f32')
    k(f"v_sub_f32 v{C}, {f32(-OFF)}, v28")
    for i in range(1, 16): k(f"v_mov_b32 v{C+i}, v{C}")
    k(f"""
    s_mov_b32 s57, 0
    s_nop 0
    v_mfma_f32_32x32x16_bf16 {vr(SA,16)}, {vr(KF,4)}, {vr(Q,4)}, {vr(C,16)}
    ds_read_b128 {vr(KF,4)}, v{AK} offset:{TP}
    ds_read_b128 {vr(VL,4)}, v{AV}
    """)
    for i in range(8): k(f"v_mov_b32 v{SB+8+i}, 0")
    k("s_nop 1")
    ST(5)
    k(".p2align 3\nL_LOOP:")
    for u in range(4):
        cur, oth = (SA, SB) if u % 2 == 0 else (SB, SA)
        for e in range(16):
            k(f"v_exp_f32 v{cur+e}, v{cur+e}")
            if e == 1: k(f"s_waitcnt lgkmcnt(2)\nv_smfmac_f32_32x32x32_bf16 {vr(O,16)}, {vr(VH,4)}, {vr(oth+8,8)}, v{IDX}\nds_read_b128 {vr(VH,4)}, v{AV} offset:{u*TP+528}")
            if e == 5: k(f"s_waitcnt lgkmcnt(2)\nv_mfma_f32_32x32x16_bf16 {vr(oth,16)}, {vr(KF,4)}, {vr(Q,4)}, {vr(C,16)}\nds_read_b128 {vr(KF,4)}, v{AK} offset:{(u+2)*TP}")
            if e == 10: k(f"s_waitcnt lgkmcnt(2)\nv_smfmac_f32_32x32x32_bf16 {vr(O,16)}, {vr(VL,4)}, {vr(cur,8)}, v{IDX}\nds_read_b128 {vr(VL,4)}, v{AV} offset:{(u+1)*TP}")
    k(f"""
    v_add_u32 v{AK}, {4*TP}, v{AK}
    v_add_u32 v{AV}, {4*TP}, v{AV}
    s_add_u32 s57, s57, 1
    s_cmp_lt_u32 s57, 16
    s_cbranch_scc1 L_EVENT
    s_waitcnt lgkmcnt(0)
    v_smfmac_f32_32x32x32_bf16 {vr(O,16)}, {vr(VH,4)}, {vr(SB+8,8)}, v{IDX}
    s_mov_b32 s44, 0
    L_FINISH:
    s_nop 10
    v_mov_b32 v29, v{O+8}
    v_add_f32 v28, abs(v{O}), abs(v{O+1})
    v_add_f32 v28, v28, abs(v{O+2})
    v_permlane32_swap_b32 v{O+8}, v29
    v_rcp_f32 v29, v{O+8}
    v_fmac_f32 v28, {f32(256.0)}, v{O+8}
    """)
    for i in range(3, 8): k(f"v_add_f32 v28, v28, abs(v{O+i})")
    for i in range(8): k(f"v_mul_f32 v{O+i}, v{O+i}, v29")
    k(f"""
    v_mov_b32 v29, 0x7f800000
    v_cmp_nlt_f32 vcc, v28, v29
    s_cmp_lg_u32 s44, 0
    s_cbranch_scc1 L_OK
    s_cbranch_vccnz L_RETRY
    L_OK:
    """)
    for i in range(4): k(f"v_cvt_pk_bf16_f32 v{O+i}, v{O+2*i}, v{O+2*i+1}")
    for i in range(4): k(f"v_min_u32 v{O+i}, -2, v{O+i}")
    k(f"buffer_store_dwordx4 {vr(O,4)}, v3, s[28:31], s56 offen sc1\ns_setprio 0")
    ST(6)
    A, T, LATE, RES = 32, 16, 64, 96
    first = []
    for q in range(2):
        pre = f"s_add_u32 s48, s42, {5*65536 + q*4096}\n"
        for o in range(4): first.append((pre if o == 0 else '') + f"buffer_load_dwordx4 {vr(LATE+16*q+4*o,4)}, v2, s[28:31], s48 offen offset:{o*1024} sc1")
    late = []
    for q in range(2):
        pre = f"s_add_u32 m0, s41, {65536 + q*4096}\ns_add_u32 s48, s42, {7*65536 + q*4096}\n"
        for o in range(4): late.append((pre if o == 0 else '') + f"buffer_load_dwordx4 v2, s[28:31], s48 offen offset:{o*1024} sc1 lds")
    k.srd(20, 60, 1024); k.srd(24, 68, 2097152)
    k(f"buffer_load_dwordx4 v[8:11], v2, s[16:19], s55 offen\nbuffer_load_dwordx4 v[12:15], v2, s[20:23], 0 offen")
    for x in first: k(x)
    k(f"""
    s_lshl_b32 s41, s36, 13
    s_lshl_b32 s46, s53, 13
    s_lshl_b32 s47, s36, 10
    s_add_u32 s46, s46, s47
    s_add_u32 s46, s46, {OB}
    s_add_u32 s47, s47, {AX}
    v_add_u32 v5, s47, v2
    v_add_u32 v6, s41, v2
    v_add_u32 v4, {AX}, v2
    v_bfe_u32 v0, v1, 3, 1
    v_mov_b32 v7, 0x44444444
    v_mov_b32 v3, 0xeeeeeeee
    v_cmp_eq_u32 vcc, 1, v0
    s_mov_b32 s39, {SPIN}
    s_nop 0
    v_cndmask_b32 v7, v7, v3, vcc
    s_barrier
    """)
    ST(7)
    for x in late[:pre_late]: k(x)
    for i in range(16): k(f"v_mov_b32 v{T+i}, 0")
    k(f"""
    L_OP_POLL:
    buffer_load_dwordx4 {vr(A,4)}, v2, s[28:31], s46 offen sc1
    s_sub_u32 s39, s39, 1
    s_cbranch_scc1 L_OP_OUT
    s_waitcnt vmcnt(0)
    v_max3_u32 v{A+4}, v{A}, v{A+1}, v{A+2}
    v_max_u32 v{A+4}, v{A+4}, v{A+3}
    v_cmp_eq_u32 vcc, -1, v{A+4}
    s_cbranch_vccnz L_OP_POLL
    L_OP_OUT:
    s_waitcnt vmcnt(0)
    ds_write_b128 v5, {vr(A,4)}
    """)
    ST(8)
    for x in late[pre_late:]: k(x)
    k(f"""
    v_and_b32 v0, 15, v1
    v_lshlrev_b32 v0, 2, v0
    v_lshrrev_b32 v3, 5, v1
    v_lshl_add_u32 v0, v3, 7, v0
    v_bfe_u32 v3, v1, 4, 1
    v_mul_u32_u24 v3, {4*272}, v3
    s_mul_i32 s46, s36, 8208
    v_add3_u32 v0, v0, v3, s46
    s_mul_i32 s46, s36, 272
    v_lshrrev_b32 v5, 3, v1
    v_mul_u32_u24 v5, 8208, v5
    v_and_b32 v3, 7, v1
    v_lshl_add_u32 v3, v3, 5, s46
    v_add_u32 v3, v3, v5
    s_waitcnt lgkmcnt(0)
    s_barrier
    """)
    ST(9)
    for s in range(8): k(f"ds_read_b128 {vr(A+4*s,4)}, v4 offset:{s*1024}")
    def sm(s, base):
        for i in range(4): k(f"v_smfmac_f32_16x16x64_bf16 {vr(T+4*i,4)}, {vr(A+4*s,4)}, {vr(base+8*i,8)}, v7")
    k("s_waitcnt lgkmcnt(7)"); sm(0, RES)
    k("s_waitcnt lgkmcnt(0)")
    for o in range(8): k(f"ds_read_b128 {vr(RES+4*o,4)}, v6 offset:{o*1024}")
    sm(1, RES+32)
    k("v_add_u32 v6, 65536, v6\ns_waitcnt vmcnt(0)")
    sm(2, RES+64)
    k("s_waitcnt lgkmcnt(4)")
    for o in range(8): k(f"ds_read_b128 {vr(RES+32+4*o,4)}, v6 offset:{o*1024}")
    sm(3, RES+96); sm(4, RES+128); sm(5, LATE)
    k("s_waitcnt lgkmcnt(8)"); sm(6, RES)
    k("s_waitcnt lgkmcnt(0)"); sm(7, RES+32)
    for i in range(4):
        k(f"v_lshlrev_b32 v{48+2*i}, 16, v{8+i}\nv_and_b32 v{49+2*i}, 0xffff0000, v{8+i}")
    ST(10)
    for r in range(4): k(f"v_permlane32_swap_b32 v{T+r}, v{T+8+r}\nv_permlane32_swap_b32 v{T+4+r}, v{T+12+r}")
    for r in range(0, 8, 2): k(f"v_pk_add_f32 {vr(T+r,2)}, {vr(T+r,2)}, {vr(T+8+r,2)}")
    for r in range(4): k(f"ds_write2_b32 v0, v{T+r}, v{T+4+r} offset0:{r*68} offset1:{r*68+16}")
    for i in range(4):
        k(f"v_lshlrev_b32 v{56+2*i}, 16, v{12+i}\nv_and_b32 v{57+2*i}, 0xffff0000, v{12+i}")
    k("s_waitcnt lgkmcnt(0)\ns_barrier\nds_read_b128 v[40:43], v3\nds_read_b128 v[44:47], v3 offset:16")
    k("v_pk_add_f32 v[38:39], v[56:57], v[58:59]\nv_pk_add_f32 v[36:37], v[60:61], v[62:63]\nv_pk_add_f32 v[38:39], v[38:39], v[36:37]\nv_add_f32 v35, v38, v39")
    k("s_waitcnt lgkmcnt(0)")
    for i in range(0, 8, 2): k(f"v_pk_add_f32 {vr(40+i,2)}, {vr(40+i,2)}, {vr(48+i,2)}")
    k("""
    v_pk_add_f32 v[16:17], v[40:41], v[42:43]
    v_pk_mul_f32 v[18:19], v[40:41], v[40:41]
    v_pk_mul_f32 v[20:21], v[40:41], v[56:57]
    v_pk_add_f32 v[16:17], v[16:17], v[44:45]
    v_pk_fma_f32 v[18:19], v[42:43], v[42:43], v[18:19]
    v_pk_fma_f32 v[20:21], v[42:43], v[58:59], v[20:21]
    v_pk_add_f32 v[16:17], v[16:17], v[46:47]
    v_pk_fma_f32 v[18:19], v[44:45], v[44:45], v[18:19]
    v_pk_fma_f32 v[20:21], v[44:45], v[60:61], v[20:21]
    v_pk_fma_f32 v[18:19], v[46:47], v[46:47], v[18:19]
    v_pk_fma_f32 v[20:21], v[46:47], v[62:63], v[20:21]
    v_add_f32 v32, v16, v17
    v_add_f32 v33, v18, v19
    v_add_f32 v34, v20, v21
    """)
    for st in ['quad_perm:[1,0,3,2]', 'quad_perm:[2,3,0,1]', 'row_half_mirror', 'row_mirror', 'row_bcast:15 row_mask:0xa', 'row_bcast:31 row_mask:0xc']:
        for r in (35, 32, 33, 34): k(f"v_add_f32_dpp v{r}, v{r}, v{r} {st}")
    k(f"""
    v_mul_f32 v32, {f32(1/512)}, v32
    v_mul_f32 v33, {f32(1/512)}, v33
    v_fma_f32 v33, -v32, v32, v33
    v_add_f32 v37, {f32(1e-5)}, v33
    v_rsq_f32 v33, v37
    v_fma_f32 v34, -v32, v35, v34
    s_sub_u32 s47, 2047, s54
    v_mul_f32 v34, v34, v33
    v_mul_f32 v35, v32, v33
    v_ashrrev_i32 v36, 31, v34
    v_or_b32 v36, 0x80000000, v36
    v_xor_b32 v34, v34, v36
    v_and_b32 v34, 0xfffff800, v34
    v_or_b32 v34, s47, v34
    v_min_u32 v34, -2, v34
    s_lshl_b32 s46, s36, 2
    s_add_u32 s46, s46, {MISC}
    v_mov_b32 v36, s46
    s_mov_b32 exec_lo, 0
    s_mov_b32 exec_hi, 0x80000000
    ds_write_b32 v36, v34
    s_mov_b64 exec, -1
    v_readlane_b32 s44, v33, 63
    v_readlane_b32 s45, v35, 63
    s_waitcnt lgkmcnt(0)
    s_barrier
    """)
    ST(11)
    k(f"""
    s_cmp_lg_u32 s36, 0
    s_cbranch_scc1 L_NOKEY
    v_mov_b32 v36, {MISC}
    ds_read_b128 v[16:19], v36
    ds_read_b128 v[20:23], v36 offset:16
    s_lshl_b32 s46, s2, 5
    s_add_u32 s46, s46, {KEY2}
    s_waitcnt lgkmcnt(0)
    v_max_u32 v24, v16, v17
    v_min_u32 v25, v16, v17
    """)
    for i in range(2, 8): k(f"v_med3_u32 v25, v24, v25, v{16+i}\nv_max_u32 v24, v24, v{16+i}")
    k(f"""
    s_mov_b64 exec, 1
    buffer_store_dwordx2 v[24:25], v2, s[28:31], s46 offen sc1
    s_mov_b64 exec, -1
    L_NOKEY:
    v_mov_b32 v35, s45
    """)
    for i in range(8): k(f"v_fma_f32 v{48+i}, v{40+i}, s44, -v35")
    for i in range(0, 8, 2): k(f"v_pk_add_f32 {vr(40+i,2)}, {vr(40+i,2)}, {vr(48+i,2)}")
    for i in range(4): k(f"v_cvt_pk_bf16_f32 v{48+i}, v{48+2*i}, v{49+2*i}")
    for i in range(4): k(f"v_min_u32 v{48+i}, -2, v{48+i}")
    k(f"s_add_u32 s46, s55, {HN}\nbuffer_store_dwordx4 v[48:51], v2, s[28:31], s46 offen sc1")
    for i in range(4): k(f"v_cvt_pk_bf16_f32 v{40+i}, v{40+2*i}, v{41+2*i}")
    k(f"""
    v_fma_f32 v33, v37, v33, 1.0      ; 1 + sd
    v_min_u32 v32, -2, v32
    s_lshl_b32 s46, s54, 3
    v_min_u32 v33, -2, v33
    s_add_u32 s46, s46, {STAT - 63*16}
    s_mov_b32 exec_lo, 0
    s_mov_b32 exec_hi, 0x80000000
    buffer_store_dwordx2 v[32:33], v2, s[28:31], s46 offen sc1
    s_mov_b64 exec, -1
    """)
    WD = 65536
    k("s_cmp_lt_u32 s2, 224\ns_cbranch_scc1 L_NOWD")
    k.srd(32, 66, 1792*1024)
    k(f"""
    v_lshrrev_b32 v5, 1, v1
    v_lshlrev_b32 v5, 10, v5
    v_and_b32 v6, 1, v1
    v_lshl_add_u32 v5, v6, 4, v5
    s_mul_i32 s46, s36, {224*1024}
    s_lshl_b32 s58, s37, 5
    s_add_u32 s46, s46, s58
    s_mul_i32 s59, s36, 7168
    s_add_u32 s59, s59, {WD}
    """)
    for s in range(7):
        k(f"s_add_u32 m0, s59, {s*1024}\ns_add_u32 s47, s46, {s*32*1024}\nbuffer_load_dwordx4 v5, s[32:35], s47 offen lds")
    Bf, Af = 64, 128
    k(f"""
    L_NOWD:
    v_lshrrev_b32 v7, 4, v1
    s_cmp_lg_u32 s36, 0
    s_cbranch_scc1 L_TOPW
    v_bfe_u32 v4, v1, 2, 2
    v_lshl_add_u32 v4, v7, 3, v4
    v_lshlrev_b32 v4, 4, v4
    v_and_b32 v6, 1, v1
    v_lshl_add_u32 v4, v6, 3, v4
    v_bfe_u32 v6, v1, 1, 1
    v_lshl_add_u32 v4, v6, 13, v4
    v_add_u32 v4, {FW}, v4
    s_mov_b32 s46, {KEY2}
    s_mov_b32 s47, {KEY2+4096}
    s_mov_b32 s39, {SPIN}
    v_lshlrev_b32 v5, 5, v1
    """)
    for s in range(16):
        k(f"ds_read_b64_tr_b16 {vr(Bf+4*s,2)}, v4 offset:{s*512}\nds_read_b64_tr_b16 {vr(Bf+4*s+2,2)}, v4 offset:{s*512+64}")
        if s % 4 == 3 and s < 15: k("s_waitcnt lgkmcnt(4)")
    ST(12)
    k(f"""
    L_KEY_POLL:
    buffer_load_dwordx2 v[16:17], v5, s[28:31], s46 offen sc1
    buffer_load_dwordx2 v[18:19], v5, s[28:31], s46 offen offset:2048 sc1
    buffer_load_dwordx2 v[20:21], v5, s[28:31], s47 offen sc1
    buffer_load_dwordx2 v[22:23], v5, s[28:31], s47 offen offset:2048 sc1
    s_sub_u32 s39, s39, 1
    s_cbranch_scc1 L_KEY_OUT
    s_waitcnt vmcnt(0)
    v_max3_u32 v24, v16, v17, v18
    v_max3_u32 v25, v19, v20, v21
    v_max3_u32 v24, v24, v22, v23
    v_max_u32 v24, v24, v25
    v_cmp_eq_u32 vcc, -1, v24
    s_cbranch_vccnz L_KEY_POLL
    L_KEY_OUT:
    s_waitcnt vmcnt(0)
    """)
    ST(13)
    top2(k, 16, 8, 24, 25, 26, 27, 44, 45)
    k(f"""
    v_mov_b32 v36, {MISC+64}
    ds_write_b64 v36, v[24:25]
    s_waitcnt lgkmcnt(0)
    L_TOPW:
    s_barrier
    s_cmp_eq_u32 s36, 0
    s_cbranch_scc1 L_HAVETOP
    v_mov_b32 v36, {MISC+64}
    ds_read_b64 v[24:25], v36
    s_waitcnt lgkmcnt(0)
    v_readfirstlane_b32 s44, v24
    v_readfirstlane_b32 s45, v25
    L_HAVETOP:
    s_andn2_b32 s46, 0x7ff, s44
    s_andn2_b32 s47, 0x7ff, s45
    s_cmp_lt_u32 s2, 224
    s_cbranch_scc0 L_DOWN
    s_cmp_eq_u32 s36, 0
    s_cbranch_scc0 L_STOUT
    """)
    ST(14)
    k(f"""
    s_lshl_b32 s58, s46, 10
    s_lshl_b32 s59, s47, 10
    v_and_b32 v4, 1, v1
    v_mov_b32 v5, s58
    v_mov_b32 v6, s59
    v_cmp_eq_u32 vcc, 1, v4
    s_mov_b32 s48, {HN}
    s_mov_b32 s39, {SPIN}
    v_cndmask_b32 v5, v5, v6, vcc
    v_lshl_add_u32 v5, v7, 4, v5
    L_HN_POLL:
    """)
    for s in range(16): k(f"buffer_load_dwordx4 {vr(Af+4*s,4)}, v5, s[28:31], s48 offen offset:{s*64} sc1")
    k("v_mov_b32 v8, 0\nv_mov_b32 v9, 0\nv_mov_b32 v10, 0\nv_mov_b32 v11, 0\nv_mov_b32 v12, 0")
    for s in range(16):
        k(f"s_waitcnt vmcnt({15-s})\nv_mfma_f32_16x16x32_bf16 v[8:11], {vr(Af+4*s,4)}, {vr(Bf+4*s,4)}, v[8:11]")
        k(f"v_max3_u32 v12, v12, v{Af+4*s}, v{Af+4*s+1}\nv_max3_u32 v12, v12, v{Af+4*s+2}, v{Af+4*s+3}")
    k(f"""
    v_cmp_eq_u32 vcc, -1, v12
    s_sub_u32 s39, s39, 1
    s_cbranch_scc1 L_HN_OUT
    s_nop 4
    s_cbranch_vccnz L_HN_POLL
    L_HN_OUT:
    s_nop 4
    """)
    ST(15)
    k(f"""
    v_cmp_lt_u32 vcc, 15, v1
    s_and_b32 s58, s2, 7
    s_mul_i32 s58, s58, 28
    v_cndmask_b32 v8, v8, v9, vcc
    s_lshr_b32 s59, s2, 3
    v_mul_f32 v12, {f32(-LOG2E)}, v8
    v_exp_f32 v12, v12
    v_mov_b32_dpp v14, v8 row_ror:8
    v_add_f32 v12, 1.0, v12
    v_rcp_f32 v12, v12
    v_mul_f32 v8, v8, v14
    s_add_u32 s58, s58, s59
    v_mul_f32 v8, v8, v12
    s_lshl_b32 s58, s58, 7
    s_add_u32 s58, s58, {ACT}
    v_mov_b32_dpp v9, v8 quad_perm:[1,0,3,2]
    v_and_b32 v10, 7, v1
    v_cvt_pk_bf16_f32 v8, v8, v9
    v_lshlrev_b32 v9, 4, v7
    v_min_u32 v8, -2, v8
    v_lshl_add_u32 v9, v10, 1, v9
    s_mov_b64 exec, 0x550055
    buffer_store_dword v8, v9, s[28:31], s58 offen sc1
    s_mov_b64 exec, -1
    L_STOUT:
    s_cmp_eq_u32 s54, s46
    s_cbranch_scc1 L_END
    s_cmp_eq_u32 s54, s47
    s_cbranch_scc1 L_END
    buffer_store_dwordx4 v[40:43], v2, s[24:27], s55 offen
    L_END:
    s_endpgm
    """)
    PX = MISC + 128
    k(f"""
    L_DOWN:
    s_cmp_eq_u32 s54, s46
    s_cbranch_scc1 L_DN1
    s_cmp_eq_u32 s54, s47
    s_cbranch_scc1 L_DN1
    buffer_store_dwordx4 v[40:43], v2, s[24:27], s55 offen
    L_DN1:
    v_bfe_u32 v4, v1, 2, 2
    v_lshl_add_u32 v4, v7, 3, v4
    v_lshlrev_b32 v4, 5, v4
    v_and_b32 v6, 3, v1
    v_lshl_add_u32 v4, v6, 3, v4
    v_add_u32 v4, s59, v4
    v_and_b32 v5, 1, v1
    v_lshlrev_b32 v5, 4, v5
    v_lshl_add_u32 v5, v7, 7, v5
    s_mul_i32 s48, s36, 3584
    s_add_u32 s48, s48, {ACT}
    v_and_b32 v6, 1, v7
    v_mov_b32 v12, s44
    v_mov_b32 v13, s45
    v_cmp_eq_u32 vcc, 1, v6
    s_mov_b32 s39, {SPIN}
    s_add_u32 s41, s58, {HN}
    s_mov_b32 s43, {STAT}
    v_cndmask_b32 v12, v12, v13, vcc
    v_not_b32 v13, v12
    v_and_b32 v13, 0x7ff, v13
    v_and_b32 v14, 14, v1
    v_lshlrev_b32 v14, 1, v14
    v_lshl_add_u32 v15, v13, 10, v14
    v_lshlrev_b32 v20, 3, v13
    v_and_b32 v14, 15, v1
    v_lshlrev_b32 v14, 1, v14
    v_lshl_add_u32 v13, v13, 10, v14
    s_waitcnt vmcnt(0)
    """)
    for s in range(7):
        k(f"ds_read_b64_tr_b16 {vr(Bf+4*s,2)}, v4 offset:{s*1024}\nds_read_b64_tr_b16 {vr(Bf+4*s+2,2)}, v4 offset:{s*1024+128}")
    k(f"""
    v_not_b32 v16, v12
    v_ashrrev_i32 v16, 31, v16
    v_or_b32 v16, 0x80000000, v16
    v_xor_b32 v16, v16, v12
    v_mul_f32 v16, {f32(-LOG2E)}, v16
    v_exp_f32 v16, v16
    s_lshl_b32 s42, s36, 7
    v_add_f32 v16, 1.0, v16
    v_rcp_f32 v16, v16
    s_add_u32 s42, s42, {PX}
    v_and_b32 v4, 15, v1
    v_lshl_add_u32 v4, v4, 2, s42
    v_and_b32 v6, 31, v1
    v_lshlrev_b32 v6, 2, v6
    v_add_u32 v6, {PX}, v6
    s_waitcnt lgkmcnt(0)
    """)
    ST(16)
    k("L_ACT_POLL:\nbuffer_load_dword v14, v15, s[28:31], s41 offen sc1\nbuffer_load_dwordx2 v[18:19], v20, s[28:31], s43 offen sc1")
    for s in range(7): k(f"buffer_load_dwordx4 {vr(Af+4*s,4)}, v5, s[28:31], s48 offen offset:{s*512} sc1")
    k("v_mov_b32 v8, 0\nv_mov_b32 v9, 0\nv_mov_b32 v10, 0\nv_mov_b32 v11, 0\ns_waitcnt vmcnt(7)\nv_max3_u32 v17, v14, v18, v19")
    for s in range(7):
        k(f"s_waitcnt vmcnt({6-s})\nv_mfma_f32_16x16x32_bf16 v[8:11], {vr(Af+4*s,4)}, {vr(Bf+4*s,4)}, v[8:11]")
        k(f"v_max3_u32 v17, v17, v{Af+4*s}, v{Af+4*s+1}\nv_max3_u32 v17, v17, v{Af+4*s+2}, v{Af+4*s+3}")
    k(f"""
    v_cmp_eq_u32 vcc, -1, v17
    s_sub_u32 s39, s39, 1
    s_cbranch_scc1 L_ACT_OUT
    s_nop 2
    s_cbranch_vccnz L_ACT_POLL
    L_ACT_OUT:
    s_nop 2
    """)
    ST(17)
    k(f"""
    ds_write2_b32 v4, v8, v9 offset1:16
    s_waitcnt lgkmcnt(0)
    s_barrier
    s_cmp_lg_u32 s36, 0
    s_cbranch_scc1 L_END
    """)
    for w in range(0, 8, 2): k(f"ds_read2_b32 {vr(24+w,2)}, v6 offset0:{w*32} offset1:{w*32+32}")
    k(f"""
    v_and_b32 v6, 1, v1
    v_lshlrev_b32 v17, 16, v14
    v_and_b32 v14, 0xffff0000, v14
    v_cmp_eq_u32 vcc, 1, v6
    s_waitcnt lgkmcnt(0)
    v_pk_add_f32 v[24:25], v[24:25], v[26:27]
    v_cndmask_b32 v14, v17, v14, vcc
    v_pk_add_f32 v[28:29], v[28:29], v[30:31]
    v_fma_f32 v14, v14, v19, v18
    v_pk_add_f32 v[24:25], v[24:25], v[28:29]
    v_add_f32 v24, v24, v25
    v_fmac_f32 v14, v24, v16
    v_cvt_pk_bf16_f32 v14, v14, v14
    buffer_store_short v14, v13, s[24:27], s58 offen
    s_endpgm
    """)
    def kvload2():
        for i in range(12):
            k(f"s_mov_b32 s47, {KVF + 24576 + i*8192}")
            k(f"buffer_load_dwordx4 {vr(STG+8*i,4)}, v23, s[28:31], s47 offen sc1")
            k(f"buffer_load_dwordx4 {vr(STG+8*i+4,4)}, v23, s[28:31], s47 offen offset:1024 sc1")
    k(f"""
    L_LAG:
    s_mov_b32 s58, {wbase[1]}
    s_mov_b32 s59, {free[1]}
    s_mov_b32 s39, {SPIN}
    v_add_u32 v24, {12*TP}, v24
    v_add_u32 v25, {12*TP}, v25
    v_add_u32 v30, {24*TP}, v24
    v_add_u32 v31, {24*TP}, v25
    s_cmp_lg_u32 s36, 5
    s_cbranch_scc1 L_LAG_LOAD
    s_and_b32 s46, s2, 7
    s_lshl_b32 s46, s46, 7
    s_add_u32 s46, s46, {CNTB}
    v_mov_b32 v28, s46
    v_mov_b32 v29, 1
    s_mov_b64 exec, 1
    global_atomic_add v28, v29, s[72:73] sc1
    s_mov_b64 exec, -1
    L_LAG_LOAD:
    """)
    kvload2()
    k(f"""
    s_waitcnt vmcnt(0)
    """)
    chk(STG, 96, 29)
    k("s_sub_u32 s39, s39, 1\ns_cbranch_scc1 L_LAG_OUT\ns_cbranch_vccnz L_LAG_LOAD\nL_LAG_OUT:")
    for i in range(12):
        a, b, o = (24, 25, i*4*TP) if i < 6 else (30, 31, (i-6)*4*TP)
        k(f"ds_write_b128 v{a}, {vr(STG+8*i,4)} offset:{o}\nds_write_b128 v{b}, {vr(STG+8*i+4,4)} offset:{o}")
    k(f"""
    s_waitcnt lgkmcnt(0)
    s_barrier
    s_setprio 1
    s_branch L_START
    """)
    k(f"""
    L_EVENT:
    s_cmp_eq_u32 s51, 0
    s_cbranch_scc0 L_EV1
    s_cmp_eq_u32 s57, {fill}
    s_cbranch_scc0 L_EV0
    s_barrier
    s_branch L_LOOP
    L_EV0:
    s_cmp_eq_u32 s57, {prio}
    s_cbranch_scc0 L_EV1
    s_setprio 0
    L_EV1:
    s_cmp_eq_u32 s57, s59
    s_cbranch_scc1 L_FREE
    s_sub_u32 s39, s57, s58
    s_cmp_gt_u32 s39, 7
    s_cbranch_scc1 L_LOOP
    s_cmp_eq_u32 s39, 1
    s_cbranch_scc1 L_LOOP
    s_cmp_eq_u32 s39, 2
    s_cbranch_scc1 L_BP
    s_cmp_eq_u32 s39, 3
    s_cbranch_scc1 L_W0
    s_cmp_eq_u32 s39, 4
    s_cbranch_scc1 L_W1
    s_cmp_eq_u32 s39, 5
    s_cbranch_scc1 L_W2
    s_cmp_eq_u32 s39, 6
    s_cbranch_scc1 L_W3
    s_cmp_eq_u32 s39, 7
    s_cbranch_scc1 L_W4
    s_cmp_eq_u32 s36, 7
    s_cbranch_scc0 L_NOWDW
    """)
    k.srd(32, 66, 1792*1024)
    k(f"""
    v_lshlrev_b32 v28, 10, v1
    s_lshr_b32 s46, s2, 3
    s_mul_i32 s46, s46, {56*1024}
    s_and_b32 s47, s2, 7
    s_lshl_b32 s47, s47, 7
    s_add_u32 s46, s46, s47
    buffer_load_dword v30, v28, s[32:35], s46 offen
    L_NOWDW:
    s_cmp_lt_u32 s2, 224
    s_cbranch_scc0 L_LOOP
    s_and_b32 s46, s2, 7
    s_mul_i32 s46, s46, 28
    s_lshr_b32 s47, s2, 3
    s_add_u32 s46, s46, s47
    s_lshl_b32 s46, s46, 4
    s_mul_i32 s47, s36, {64*3584}
    s_add_u32 s46, s46, s47
    v_mul_u32_u24 v28, 3584, v1
    s_lshl_b32 s47, s36, 10
    """)
    k.srd(32, 62, 512*3584)
    k(f"s_add_u32 m0, s47, {FW}\ns_nop 0\nbuffer_load_dwordx4 v28, s[32:35], s46 offen lds")
    k.srd(32, 64, 512*3584)
    k(f"s_add_u32 m0, s47, {FW+8192}\ns_nop 0\nbuffer_load_dwordx4 v28, s[32:35], s46 offen lds\ns_branch L_LOOP")
    k(f"""
    L_FREE:
    s_barrier
    s_lshl_b32 s47, s36, 13
    """)
    for q in range(2):
        k(f"s_add_u32 m0, s47, {q*4096}\ns_add_u32 s48, s42, {6*65536 + q*4096}")
        for o in range(4): k(f"buffer_load_dwordx4 v2, s[28:31], s48 offen offset:{o*1024} sc1 lds")
    k(f"""
    s_branch L_LOOP
    L_BP:
    v_and_b32 v28, 7, v1
    v_lshlrev_b32 v28, 7, v28
    v_add_u32 v28, {CNTB}, v28
    global_load_dword v29, v28, s[72:73] sc1
    s_branch L_LOOP
    L_W0:
    s_mov_b32 s39, {SPIN}
    L_B_POLL:
    s_waitcnt vmcnt(0)
    v_cmp_gt_u32 vcc, 32, v29
    s_sub_u32 s39, s39, 1
    s_cbranch_scc1 L_B_OUT
    s_cbranch_vccz L_B_OUT
    s_sleep 16
    global_load_dword v29, v28, s[72:73] sc1
    s_branch L_B_POLL
    L_B_OUT:
    """)
    for b in range(5):
        if b: k(f"L_W{b}:")
        for q in range(2):
            k(f"s_add_u32 s48, s42, {b*65536 + q*4096}")
            for o in range(4): k(f"buffer_load_dwordx4 {vr(RES+32*b+16*q+4*o,4)}, v2, s[28:31], s48 offen offset:{o*1024} sc1")
        k("s_branch L_LOOP")
    k(f"""
    L_RETRY:
    s_mov_b32 s44, 1
    v_mov_b32 v28, 0xff800000
    s_mov_b32 s47, 0
    L_RMAX:
    buffer_load_dwordx4 {vr(KF,4)}, v2, s[28:31], s47 offen sc1
    s_add_u32 s47, s47, 2048
    s_waitcnt vmcnt(0)
    v_mfma_f32_32x32x16_bf16 {vr(SA,16)}, {vr(KF,4)}, {vr(Q,4)}, 0
    s_nop 11
    """)
    for i in range(8): k(f"v_max3_f32 v28, v28, v{SA+2*i}, v{SA+2*i+1}")
    k("s_cmp_lt_u32 s47, 0x20000\ns_cbranch_scc1 L_RMAX")
    allreduce_halves(k, 28, 29, 'v_max_f32')
    k(f"v_sub_f32 v{C}, 0, v28")
    for i in range(1, 16): k(f"v_mov_b32 v{C+i}, v{C}")
    for i in range(16): k(f"v_mov_b32 v{O+i}, 0")
    k(f"""
    v_cmp_eq_u32 vcc, 16, v27
    v_mov_b32 v28, 0x3f803f80
    v_mov_b32 v29, 0
    v_cndmask_b32 v28, v29, v28, vcc
    """)
    for i in range(4): k(f"v_mov_b32 v{VL+i}, v28\nv_mov_b32 v{VH+i}, v28")
    k(f"""
    s_mov_b32 s47, 0
    L_RLOOP:
    buffer_load_dwordx4 {vr(KF,4)}, v2, s[28:31], s47 offen sc1
    s_mov_b32 exec_lo, 0xffff
    s_mov_b32 exec_hi, 0xffff
    buffer_load_dwordx4 {vr(VL,4)}, v26, s[28:31], s47 offen sc1
    buffer_load_dwordx4 {vr(VH,4)}, v26, s[28:31], s47 offen offset:512 sc1
    s_mov_b64 exec, -1
    s_add_u32 s47, s47, 2048
    s_waitcnt vmcnt(0)
    v_mfma_f32_32x32x16_bf16 {vr(SA,16)}, {vr(KF,4)}, {vr(Q,4)}, {vr(C,16)}
    s_nop 11
    """)
    for e in range(16): k(f"v_exp_f32 v{SA+e}, v{SA+e}")
    k(f"""
    s_nop 1
    v_smfmac_f32_32x32x32_bf16 {vr(O,16)}, {vr(VL,4)}, {vr(SA,8)}, v{IDX}
    v_smfmac_f32_32x32x32_bf16 {vr(O,16)}, {vr(VH,4)}, {vr(SA+8,8)}, v{IDX}
    s_cmp_lt_u32 s47, 0x20000
    s_cbranch_scc1 L_RLOOP
    s_branch L_FINISH
    """)
    return k

def build(k, path):
    s = f"; @launch grid=({k.grid},1,1) block=({k.block},1,1) lds={k.lds}\n"
    s += '.amdgcn_target "amdgcn-amd-amdhsa--gfx950"\n.text\n' + k.text() + '.section .rodata,"a"\n.p2align 6\n' + k.desc()
    open(path, 'w').write(s)
    import hz
    print(path, 'hazards:', hz.check(s))
if __name__ == '__main__':
    build(fused(), 'v5.s')
    import stamp
    build(stamp.instrument(fused(stamps=True), 0), 'v5t.s')
```

```python
import re, sys
REG = re.compile(r'^(-|abs\(|\|)*([vas])(\d+|\[(\d+):(\d+)\])\)?\|?$')
def regs(tok):
    tok = tok.strip()
    if tok in ('vcc', 'vcc_lo', 'vcc_hi'): return {('s', 'vcc')}
    if tok in ('exec', 'exec_lo', 'exec_hi'): return {('s', 'exec')}
    if tok == 'm0': return {('s', 'm0')}
    m = REG.match(tok)
    if not m: return set()
    k = m.group(2)
    if m.group(4) is not None: return {(k, i) for i in range(int(m.group(4)), int(m.group(5)) + 1)}
    return {(k, int(m.group(3)))}
TRANS = ('v_exp_', 'v_log_', 'v_rcp_', 'v_rsq_', 'v_sqrt_', 'v_sin_', 'v_cos_')
class I:
    def __init__(s, text, ln):
        s.text = text; s.ln = ln
        p = text.split(None, 1); s.op = p[0]
        rest = p[1] if len(p) > 1 else ''
        ops = [o.strip() for o in re.split(r',(?![^\[]*\])', rest)] if rest else []
        if ops:
            last = ops[-1].split(); ops[-1] = last[0] if last else ''; s.mods = ' '.join(last[1:])
        else: s.mods = ''
        s.ops = ops
        op = s.op
        s.mf = op.startswith('v_mfma') or op.startswith('v_smfmac')
        s.valu = op.startswith('v_') and not s.mf
        s.salu = op.startswith('s_')
        s.ds = op.startswith('ds_')
        s.vmem = op.startswith(('buffer_', 'global_', 'flat_'))
        s.trans = op.startswith(TRANS)
        s.dot = op.startswith('v_dot')
        s.dpp = '_dpp' in op or any(x in s.mods for x in ('row_', 'quad_perm', 'wave_'))
        s.w = set(); s.r = set(); s.A = s.B = s.C = set(); s.sdata = set()
        R = [regs(o) for o in ops]
        if s.mf:
            s.w = R[0]; s.A = R[1]; s.B = R[2]
            if op.startswith('v_smfmac'): s.C = R[0]; s.B = R[2] | R[3]
            else: s.C = R[3]
            s.r = s.A | s.B | s.C
            s.passes = 8 if '32x32' in op else 4
        elif s.valu:
            s.w = set(R[0]); srcs = R[1:]
            if op.startswith(('v_add_co', 'v_addc_co', 'v_sub_co', 'v_subb_co')): s.w |= R[1]; srcs = R[2:]
            for x in srcs: s.r |= x
            if op.startswith(('v_fmac', 'v_dot2c', 'v_pk_fmac', 'v_writelane')) or 'UNUSED_PRESERVE' in s.mods or s.dpp: s.r |= R[0]
            if 'permlane' in op and 'swap' in op: s.w |= R[1]; s.r |= R[0]
            if op.startswith('v_cndmask') and len(ops) == 3: s.r |= {('s', 'vcc')}
            if op.startswith('v_cmpx'): s.w |= {('s', 'exec')}
        elif s.ds:
            if op.startswith(('ds_read', 'ds_bpermute', 'ds_permute', 'ds_swizzle')) or '_rtn' in op:
                s.w = R[0]
                for x in R[1:]: s.r |= x
            else:
                for x in R: s.r |= x
        elif s.vmem:
            lds = ' lds' in (' ' + s.mods) or '_lds_' in op
            ret = ('load' in op and not lds) or ('atomic' in op and 'sc0' in s.mods)
            if op in ('buffer_inv', 'buffer_wbl2'): pass
            elif ret:
                s.w = R[0]
                for x in R[1:]: s.r |= x
                if 'atomic' in op and op.startswith('buffer'): s.r |= R[0]
            else:
                for x in R: s.r |= x
                if lds: s.r |= {('s', 'm0')}
                if 'store' in op and ('x3' in op or 'x4' in op):
                    s.sdata = R[0] if op.startswith('buffer') else R[1]
            s.lds = lds
        elif s.salu:
            if op.startswith(('s_cmp', 's_cbranch', 's_branch', 's_waitcnt', 's_nop', 's_barrier', 's_endpgm', 's_setprio', 's_sleep', 's_bitcmp')):
                for x in R: s.r |= x
            elif R:
                s.w = set(R[0])
                for x in R[1:]: s.r |= x
                if 'saveexec' in op: s.w |= {('s', 'exec')}
    def ws(s):
        if s.op == 's_nop': return int(s.ops[0], 0) + 1
        return 1
def vonly(x): return {r for r in x if r[0] in 'va'}
def sonly(x): return {r for r in x if r[0] == 's'}
def need(p, c):
    n = 0
    if p.valu:
        wv = vonly(p.w); wsg = sonly(p.w)
        if c.mf and wv & c.r: n = max(n, 3 if p.dot else 2)
        if c.valu and c.dpp and wv & c.r: n = max(n, 2)
        if c.valu and 'permlane' in c.op and wv & c.r: n = max(n, 2)
        if c.op.startswith(('v_readlane', 'v_readfirstlane')) and wv & c.r: n = max(n, 1)
        if p.trans and c.valu and not c.trans and wv & c.r: n = max(n, 1)
        if p.trans and (c.ds or c.vmem) and wv & c.r: n = max(n, 1)
        if ('sdwa' in p.op or 'op_sel' in p.mods) and c.valu and wv & (c.r | c.w): n = max(n, 1)
        if p.dot and wv & (c.r | c.w) and not (c.op == p.op and not (wv & (c.r - c.w)) ): n = max(n, 3)
        if wsg:
            if c.vmem and wsg & c.r: n = max(n, 5)
            if c.valu and wsg & c.r: n = max(n, 4 if c.op.startswith(('v_readlane', 'v_writelane')) else 2)
            if ('s', 'exec') in wsg:
                if c.mf or c.op.startswith(('v_readlane', 'v_readfirstlane', 'v_writelane')) or 'permlane' in c.op: n = max(n, 4)
                if c.dpp: n = max(n, 5)
    if p.mf:
        big = p.passes == 8
        if c.mf:
            if p.w & (c.A | c.B): n = max(n, 12 if big else 8)
            if p.w & c.C and not (p.w == c.C and c.passes == p.passes): n = max(n, 10 if big else 6)
            if p.w & c.w and not (p.w == c.w and c.passes == p.passes): n = max(n, 10 if big else 6)
        elif (c.valu or c.ds or c.vmem) and p.w & (c.r | c.w): n = max(n, 12 if big else 8)
        if c.valu and p.C & c.w: n = max(n, 7 if big else 3)
    if p.salu and ('s', 'm0') in p.w and c.vmem and getattr(c, 'lds', False): n = max(n, 1)
    if p.vmem and p.sdata and p.sdata & c.w: n = max(n, 2 if c.valu else 1)
    return n
def check(text):
    ins = []; labels = {}
    for ln, line in enumerate(text.split('\n'), 1):
        t = line.split(';')[0].strip()
        if not t or t.startswith('.'): continue
        if t.endswith(':'): labels[t[:-1]] = len(ins); continue
        ins.append(I(t, ln))
    preds = [[] for _ in ins]
    for i, x in enumerate(ins):
        if x.op == 's_call_b64':
            preds[labels[x.ops[1]]].append(i)
            jj = labels[x.ops[1]]
            while ins[jj].op != 's_setpc_b64': jj += 1
            preds[i + 1].append(jj)
            continue
        if x.op not in ('s_branch', 's_endpgm', 's_setpc_b64') and i + 1 < len(ins): preds[i + 1].append(i)
        if x.op.startswith(('s_branch', 's_cbranch')):
            t = labels[x.ops[0]]
            if t < len(ins): preds[t].append(i)
    bad = 0
    for ci, c in enumerate(ins):
        stack = [(p, 0) for p in preds[ci]]; seen = {}
        while stack:
            pi, d = stack.pop()
            if seen.get(pi, 99) <= d: continue
            seen[pi] = d
            p = ins[pi]
            n = need(p, c)
            if n > d:
                print(f'HAZARD line {p.ln} [{p.text}] -> line {c.ln} [{c.text}] need {n} have {d}'); bad += 1
            d2 = d + p.ws()
            if d2 < 12:
                for q in preds[pi]: stack.append((q, d2))
    return bad
if __name__ == '__main__':
    n = check(open(sys.argv[1]).read()); print('hazards:', n)
```

```python
import sys, struct, math
from gen1 import Kern, vr, f32, allreduce_halves, top2, NAME
KVF = 0; STAT1 = 0x20000; WOT = 0x24000; OB = WOT + 0x80000; HN = OB + 0x200000; STAT = HN + 0x200000
KEY2 = STAT + 0x4000; ACT = KEY2 + 0x2000; CNTB = ACT + 0x8000; WS_SIZE = CNTB + 0x1000
CSCALE = 0.25 * math.log2(math.e)
OFF = 96.0
TP = 2064
SPIN = 20000
LSPIN = 2000000
LOG2E = math.log2(math.e)

def fused(prio=11, stamps=False, codepf=True, free=(14, 10), depth=3, early=0, pre_late=8, waits=1, now=False):
    k = Kern(NAME + '_kernel', 256, 512, 163840, 256, sgpr=74)
    def ST(n):
        if stamps and not (stamps == 'front' and 7 <= n <= 17): k.L.append(f'    ; STAMP {n}')
    def SF(n):
        if stamps == 'front': k.L.append(f'    ; STAMP {n}')
    XS, WSL, WKV, EX = 0, 65536, 131072, 147456
    X2 = EX + 8192; FLG = X2 + 256; CSX = FLG + 256
    FW = 141440; MISC = 159872; AX = 133120
    Q, KF, VL, VH, IDX, AK, AV, AH, C, SA, SB, O, STG = 4, 8, 12, 16, 20, 21, 22, 23, 32, 48, 64, 80, 96
    ACC = 144
    def chk(base, n, t):
        k(f"v_max3_u32 v{t}, v{base}, v{base+1}, v{base+2}")
        for i in range(3, n - 1, 2): k(f"v_max3_u32 v{t}, v{t}, v{base+i}, v{base+i+1}")
        k(f"v_max_u32 v{t}, v{t}, v{base+n-1}\nv_cmp_eq_u32 vcc, -1, v{t}")
    def setup():
        k(f"""
    s_and_b32 s49, s36, 1
    s_bfe_u32 s50, s36, 0x10001
    s_lshr_b32 s51, s36, 2
    s_mov_b32 s28, s72
    s_mov_b32 s29, s73
    s_mov_b32 s30, {WS_SIZE}
    s_mov_b32 s31, 0x00020000
    s_and_b32 s48, s36, 3
    s_lshl_b32 s47, s48, 11
    v_add_u32 v24, s47, v2
    s_movk_i32 s43, 16384
    v_and_b32 v27, 31, v1             ; d
    v_lshlrev_b32 v25, 3, v27
    s_lshl_b32 s45, s37, 9
    s_lshl_b32 s46, s49, 8
    s_add_u32 s45, s45, s46
    s_add_u32 s45, s45, {STAT1}
    v_lshrrev_b32 v26, 5, v1          ; h
    s_lshl_b32 s52, s50, 1
    s_add_u32 s52, s52, s51
    s_lshl_b32 s46, s50, 8
    s_lshl_b32 s47, s51, 5
    s_add_u32 s46, s46, s47
    s_add_u32 s46, s46, {CSX}
    v_lshl_add_u32 v9, v26, 6, s46
    s_and_b32 s46, s36, 3
    s_lshl_b32 s46, s46, 12
    s_add_u32 s46, s46, {WKV + 2048}
    v_lshl_add_u32 v11, v1, 5, s46
    s_mov_b32 s16, s4
    s_mov_b32 s17, s5
    s_lshl_b32 s53, s37, 3
    s_add_u32 s53, s53, s38           ; octet
    s_lshl_b32 s54, s53, 3
    s_add_u32 s54, s54, s36
    s_lshl_b32 s55, s54, 10
    s_lshl_b32 s56, s49, 15
    s_add_u32 s56, s56, s41
    s_lshl_b32 s39, s38, 10
    s_add_u32 s56, s56, s39
    s_lshl_b32 s39, s52, 8
    s_add_u32 s56, s56, s39
    s_add_u32 s56, s56, {OB}
    s_lshl_b32 s42, s36, 13
    s_add_u32 s42, s42, {WOT}
    v_bfe_u32 v14, v1, 3, 2
    v_lshlrev_b32 v3, 13, v14
    v_lshl_add_u32 v3, v26, 7, v3
    v_and_b32 v14, 7, v1
    v_lshl_add_u32 v3, v14, 4, v3
    s_mul_i32 s47, s48, {TP}
    v_add_u32 v30, s47, v2
    v_and_b32 v14, 15, v1
    v_mul_u32_u24 v28, {4*TP}, v14
    s_add_u32 s48, s47, 2048
    v_add_u32 v28, s48, v28
    v_mov_b32 v16, 0x3f803f80
    v_mov_b32 v17, 0x3f803f80
    v_mov_b32 v18, 0x3f803f80
    v_mov_b32 v19, 0x3f803f80
    v_lshlrev_b32 v26, 8, v26
    v_lshl_add_u32 v26, v27, 4, v26
    v_add_u32 v26, 1024, v26
    v_add_u32 v{AH}, 512, v26
    v_mov_b32 v29, 2048
    v_mov_b32 v31, 0x100000
    v_cmp_eq_u32 vcc, 16, v27
    v_mov_b32 v{IDX}, 0xdddddddd
    v_mov_b32 v{AK}, v2
    v_cndmask_b32 v29, v31, v29, vcc
    v_cmp_gt_u32 vcc, 16, v27
    s_nop 1
    v_cndmask_b32 v{AV}, v29, v26, vcc
    v_cndmask_b32 v{AH}, v29, v{AH}, vcc
    """)
    def batchC():
        k(f"""
        buffer_load_dwordx2 v[104:105], v25, s[28:31], s45 offen sc1
        buffer_load_dwordx4 v[96:99], v24, s[28:31], 0 offen sc1
        buffer_load_dwordx4 v[100:103], v24, s[28:31], s43 offen sc1
        """)
    def batchH():
        k(f"""
        s_movk_i32 s46, 8192
        s_movk_i32 s47, 24576
        buffer_load_dwordx4 v[96:99], v24, s[28:31], 0 offen sc1
        buffer_load_dwordx4 v[108:111], v24, s[28:31], 0 offen offset:1024 sc1
        buffer_load_dwordx4 v[100:103], v24, s[28:31], s46 offen sc1
        buffer_load_dwordx4 v[112:115], v24, s[28:31], s46 offen offset:1024 sc1
        buffer_load_dwordx4 v[116:119], v24, s[28:31], s43 offen sc1
        buffer_load_dwordx4 v[120:123], v24, s[28:31], s43 offen offset:1024 sc1
        buffer_load_dwordx4 v[124:127], v24, s[28:31], s47 offen sc1
        buffer_load_dwordx4 v[128:131], v24, s[28:31], s47 offen offset:1024 sc1
        buffer_load_dwordx2 v[104:105], v25, s[28:31], s45 offen sc1
        """)
    def signal(off, va, vb):
        k(f"""
        s_and_b32 s46, s2, 7
        s_lshl_b32 s46, s46, 7
        s_add_u32 s46, s46, {CNTB + off}
        v_mov_b32 v{va}, s46
        v_mov_b32 v{vb}, 1
        s_mov_b64 exec, 1
        global_atomic_add v{va}, v{vb}, s[72:73] sc1
        s_mov_b64 exec, -1
        """)
    k(f"""
    s_cmp_ge_u32 s2, 256
    s_cbranch_scc1 L_END
    s_load_dwordx8 s[4:11], s[0:1], 0
    s_load_dwordx2 s[72:73], s[0:1], 96
    s_load_dwordx4 s[68:71], s[0:1], 80
    s_load_dwordx2 s[12:13], s[0:1], 32
    s_load_dwordx8 s[60:67], s[0:1], 48
    v_lshrrev_b32 v1, 6, v0
    s_and_b32 s37, s2, 7
    v_readfirstlane_b32 s36, v1
    """)
    if codepf:
        k(f"""
        s_getpc_b64 s[58:59]
        L_PC:
        s_lshr_b32 s39, s2, 5
        s_lshr_b32 s38, s36, 1
        s_or_b32 s39, s39, s38
        s_cbranch_scc1 L_NOPF
        v_lshlrev_b32 v4, 7, v0
        v_min_u32 v4, L_CODE_END-L_PC-4, v4
        global_load_dword v5, v4, s[58:59]
        L_NOPF:
        """)
    k(f"""
    s_lshl_b32 s37, s37, 2
    s_bfe_u32 s39, s2, 0x20003
    s_add_u32 s37, s37, s39           ; g
    s_lshr_b32 s38, s2, 5             ; j
    v_and_b32 v1, 63, v0              ; lane
    v_lshlrev_b32 v2, 4, v1           ; lane*16
    s_lshl_b32 s41, s37, 16           ; g*65536
    v_mov_b32 v10, {FLG}
    s_mov_b32 s18, 2097152
    s_mov_b32 s19, 0x00020000
    s_mov_b32 s23, 0x00020000
    s_cmp_ge_u32 s36, 4
    s_cbranch_scc1 L_HELP
    v_and_b32 v12, 15, v1
    s_lshr_b32 s45, s38, 1
    s_lshl_b32 s45, s45, 14
    s_lshl_b32 s46, s36, 8
    s_add_u32 s45, s45, s46
    s_add_u32 s45, s45, s41
    v_and_b32 v14, 48, v1
    v_lshl_add_u32 v12, v12, 10, v14
    s_lshl_b32 s46, s36, 12
    s_add_u32 s47, s46, {WKV}
    s_mov_b32 m0, s47
    s_movk_i32 s22, 16384
    s_bitcmp1_b32 s38, 0
    s_waitcnt lgkmcnt(0)
    s_cselect_b32 s20, s10, s8
    s_cselect_b32 s21, s11, s9
    s_mov_b32 s16, s4
    s_mov_b32 s17, s5
    """)
    for st in range(4):
        k(f"buffer_load_dwordx4 {vr(64+4*st,4)}, v12, s[16:19], s45 offen offset:{st*64}")
        k(f"buffer_load_dwordx4 v2, s[20:23], s46 offen offset:{st*1024} lds")
    k(f"""
    s_barrier
    s_branch L_COMP
    L_HELP:
    v_mov_b32 v16, 0
    v_mov_b32 v17, 0
    v_mov_b32 v18, 0
    v_mov_b32 v19, 0
    ds_write_b128 v10, v[16:19]
    s_cmp_ge_u32 s36, 6
    s_cbranch_scc1 L_H67
    v_lshrrev_b32 v12, 3, v1
    v_and_b32 v13, 7, v1
    v_lshrrev_b32 v14, 1, v12
    s_lshl_b32 s45, s37, 1
    s_add_u32 s45, s45, s38
    s_mov_b32 s57, 0
    s_cmp_eq_u32 s36, 4
    s_cbranch_scc1 L_IS0
    v_and_b32 v14, 1, v14
    v_lshlrev_b32 v14, 2, v14
    v_add_u32 v10, 4, v10
    L_IS0:
    v_xor_b32 v15, v14, v13
    v_lshlrev_b32 v15, 4, v15
    v_lshl_add_u32 v28, v12, 10, v15
    s_cselect_b32 s39, 64, 0
    v_xor_b32 v29, s39, v28
    v_add_u32 v29, 8192, v29
    v_mov_b32 v12, 1
    s_cselect_b32 s22, s18, 524288
    s_cselect_b32 s43, 7, 16
    s_cselect_b32 s44, {XS}, {WSL}
    s_waitcnt lgkmcnt(0)
    s_cselect_b32 s20, s4, s6
    s_cselect_b32 s21, s5, s7
    s_cselect_b32 s42, s41, 0
    s_cselect_b32 s39, 0, s38
    s_lshl_b32 s39, s39, 7
    s_add_u32 s42, s42, s39
    """)
    if not early: k("s_barrier")
    SF(12)
    k(f"""
    L_ISL:
    s_cmp_lt_u32 s57, {depth}
    s_cbranch_scc1 L_IS2
    s_waitcnt vmcnt({8*(depth-1)})
    ds_write_b32 v10, v12
    v_add_u32 v12, 1, v12
    L_IS2:
    s_add_u32 s46, s45, s57
    s_and_b32 s46, s46, 7
    s_lshl_b32 s46, s46, s43
    s_add_u32 s46, s46, s42
    s_mov_b32 m0, s44
    """)
    for gi in range(0, 8, 2):
        k("s_nop 0\nbuffer_load_dwordx4 v28, s[20:23], s46 offen lds\ns_addk_i32 m0, 1024\ns_nop 0\nbuffer_load_dwordx4 v29, s[20:23], s46 offen lds\ns_addk_i32 m0, 1024\ns_addk_i32 s46, 16384")
    k(f"""
    s_addk_i32 s44, 8192
    s_add_u32 s57, s57, 1
    """)
    if early: k(f"s_cmp_eq_u32 s57, {early}\ns_cbranch_scc0 L_IS3\ns_barrier\nL_IS3:")
    k(f"""
    s_cmp_lt_u32 s57, 8
    s_cbranch_scc1 L_ISL
    s_branch L_XTRA
    L_H67:
    s_mov_b32 s30, {WS_SIZE}
    s_mov_b32 s31, 0x00020000
    s_lshr_b32 s39, s2, 3
    s_xor_b32 s46, s36, 7
    s_or_b32 s39, s39, s46
    s_waitcnt lgkmcnt(0)
    s_mov_b32 s28, s72
    s_mov_b32 s29, s73
    s_cbranch_scc1 L_H6
    v_mov_b32 v24, -1
    v_mov_b32 v25, -1
    v_mov_b32 v26, -1
    v_mov_b32 v27, -1
    s_mul_i32 s39, s2, 18432
    s_mov_b32 s46, 6
    L_INI:
    buffer_store_dwordx4 v[24:27], v2, s[28:31], s39 offen sc1
    buffer_store_dwordx4 v[24:27], v2, s[28:31], s39 offen offset:1024 sc1
    buffer_store_dwordx4 v[24:27], v2, s[28:31], s39 offen offset:2048 sc1
    s_addk_i32 s39, 3072
    s_sub_u32 s46, s46, 1
    s_cmp_lg_u32 s46, 0
    s_cbranch_scc1 L_INI
    s_lshl_b32 s39, s2, 7
    s_add_u32 s39, s39, {CNTB}
    v_lshlrev_b32 v12, 10, v1
    s_mov_b64 exec, 7
    buffer_store_dword v16, v12, s[28:31], s39 offen sc1
    s_setprio 3
    s_barrier
    v_mov_b32 v12, 1
    s_lshl_b32 s39, s2, 5
    v_mov_b32 v13, s39
    s_mov_b64 exec, 1
    s_waitcnt vmcnt(0)
    """)
    ST(19)
    k(f"""
    global_store_dword v13, v12, s[70:71] sc1
    s_mov_b64 exec, -1
    s_setprio 0
    s_branch L_W7
    L_H6:
    s_barrier
    s_cmp_eq_u32 s36, 6
    s_cbranch_scc1 L_FIN
    s_branch L_W7
    L_SETUP:
    """)
    setup()
    k(f"""
    s_setpc_b64 s[58:59]
    L_COMP:
    s_and_b32 s49, s36, 1             ; th
    s_bfe_u32 s50, s36, 0x10001       ; hp
    s_mov_b32 s40, 0x3f803f80
    v_lshrrev_b32 v13, 4, v1
    v_bfe_u32 v14, v1, 2, 2
    v_lshl_add_u32 v12, v13, 3, v14
    v_and_b32 v15, 3, v1
    v_lshlrev_b32 v15, 3, v15
    v_lshl_add_u32 v12, v12, 5, v15
    v_add_u32 v114, s47, v12          ; Wkv tr address
    v_and_b32 v12, 31, v1
    s_lshl_b32 s39, s49, 5
    v_add_u32 v12, s39, v12           ; t
    v_bfe_u32 v13, v12, 1, 3
    v_lshrrev_b32 v15, 5, v1          ; h
    v_xor_b32 v13, v13, v15
    v_lshlrev_b32 v13, 4, v13
    v_lshlrev_b32 v12, 7, v12
    v_add_u32 v4, v12, v13
    v_xor_b32 v6, 64, v4
    v_xor_b32 v7, 0x60, v4
    v_lshl_add_u32 v13, v15, 3, v14
    v_lshrrev_b32 v14, 1, v14
    v_lshlrev_b32 v14, 2, v14
    v_bfe_u32 v15, v1, 4, 1
    v_lshlrev_b32 v15, 1, v15
    v_bfe_u32 v8, v1, 1, 1
    v_add_u32 v15, v15, v8
    s_lshl_b32 s48, s50, 2
    v_add_u32 v15, s48, v15
    v_xor_b32 v15, v15, v14
    v_lshlrev_b32 v15, 4, v15
    v_lshl_add_u32 v8, v13, 7, v15
    v_and_b32 v15, 1, v1
    v_lshl_add_u32 v8, v15, 3, v8
    v_add_u32 v8, {WSL}, v8
    s_lshl_b32 s46, s36, 11
    s_add_u32 s46, s46, {EX}
    v_lshl_add_u32 v12, v1, 5, s46
    v_mov_b32 v115, 1
    """)
    k("s_call_b64 s[58:59], L_SETUP")
    for i in range(32): k(f"v_mov_b32 v{ACC+i}, 0")
    for i in range(4): k(f"v_mov_b32 v{176+i}, s40")
    for i in range(8): k(f"v_mov_b32 v{96+i}, 0")
    k("s_waitcnt vmcnt(0)\nv_xor_b32 v5, 32, v4")
    ST(1)
    for st in range(4):
        k(f"ds_read_b64_tr_b16 {vr(80+4*st,2)}, v114 offset:{st*1024}\nds_read_b64_tr_b16 {vr(82+4*st,2)}, v114 offset:{st*1024+128}")
    for i in range(16): k(f"v_dot2c_f32_bf16 v100, s40, v{64+i}\nv_dot2c_f32_bf16 v101, v{64+i}, v{64+i}")
    k("s_waitcnt lgkmcnt(0)\ns_bitcmp1_b32 s38, 0\ns_cbranch_scc1 L_VM")
    for st in range(4): k(f"v_mfma_f32_16x16x32_bf16 v[96:99], {vr(80+4*st,4)}, {vr(64+4*st,4)}, v[96:99]")
    k("s_branch L_KM\nL_VM:")
    for st in range(4): k(f"v_mfma_f32_16x16x32_bf16 v[96:99], {vr(64+4*st,4)}, {vr(80+4*st,4)}, v[96:99]")
    k("L_KM:")
    for i in range(16): k(f"v_dot2c_f32_bf16 v{102+(i&1)}, s40, v{80+i}")
    k(f"""
    ds_write_b128 v12, v[96:99]
    s_nop 1
    v_add_f32 v102, v102, v103
    ds_write_b128 v12, v[100:103] offset:16
    s_mov_b64 exec, 1
    ds_add_u32 v10, v115 offset:12
    s_mov_b64 exec, -1
    """)
    def qwait(tag):
        k(f"""
        s_cmp_lt_u32 s57, s58
        s_cbranch_scc1 L_QGO{tag}
        L_QWAIT{tag}:
        ds_read_b64 v[12:13], v10
        s_sub_u32 s39, s39, 1
        s_cbranch_scc1 L_QGO{tag}
        s_waitcnt lgkmcnt(0)
        v_min_u32 v12, v12, v13
        s_nop 0
        v_readfirstlane_b32 s58, v12
        s_cmp_lt_u32 s57, s58
        s_cbranch_scc0 L_QWAIT{tag}
        L_QGO{tag}:
        s_add_u32 s57, s57, 1
        """)
    def qrd(X, W, off, sp):
        k(f"ds_read_b128 {vr(X+4*sp,4)}, v{4+sp} offset:{off}")
        k(f"ds_read_b64_tr_b16 {vr(W+4*sp,2)}, v8 offset:{off+sp*2048}")
        k(f"ds_read_b64_tr_b16 {vr(W+2+4*sp,2)}, v8 offset:{off+sp*2048+512}")
    def qmf(X, W, sp): k(f"v_mfma_f32_32x32x16_bf16 {vr(ACC,16)}, {vr(W+4*sp,4)}, {vr(X+4*sp,4)}, {vr(ACC,16)}")
    def qcs(W, par, tag):
        k(f"s_cmp_eq_u32 s49, {par}\ns_cbranch_scc0 L_QCS{tag}")
        for sp in range(4): k(f"v_mfma_f32_32x32x16_bf16 v[160:175], {vr(W+4*sp,4)}, v[176:179], v[160:175]")
        k(f"L_QCS{tag}:")
    k(f"s_mov_b32 s57, 0\ns_mov_b32 s58, 0\ns_mov_b32 s39, {LSPIN}")
    SF(7); qwait('P'); SF(8)
    for sp in range(4): qrd(32, 48, 0, sp)
    k("L_QLOOP:")
    qwait('A')
    for sp in range(4): k("s_waitcnt lgkmcnt(9)"); qmf(32, 48, sp); qrd(64, 80, 8192, sp)
    for i in range(5): k(f"v_add_u32 v{4+i}, 16384, v{4+i}")
    qcs(48, 0, 'A')
    k("s_cmp_eq_u32 s57, 8\ns_cbranch_scc1 L_QLAST")
    qwait('B')
    for sp in range(4): k("s_waitcnt lgkmcnt(9)"); qmf(64, 80, sp); qrd(32, 48, 0, sp)
    qcs(80, 1, 'B')
    k("s_branch L_QLOOP\nL_QLAST:")
    SF(9)
    k(f"""
    s_setprio 2
    L_QF0:
    ds_read_b32 v12, v10 offset:8
    s_sub_u32 s39, s39, 1
    s_cbranch_scc1 L_QF1
    s_waitcnt lgkmcnt(0)
    v_cmp_eq_u32 vcc, 0, v12
    s_cbranch_vccnz L_QF0
    L_QF1:
    s_waitcnt lgkmcnt(0)
    """)
    qmf(64, 80, 0); batchC()
    for sp in range(1, 4): qmf(64, 80, sp)
    k(f"""
    """)
    qcs(80, 1, 'C')
    k(f"""
    s_lshl_b32 s46, s36, 7
    s_add_u32 s46, s46, {CSX}
    v_lshl_add_u32 v13, v1, 1, s46    ; lanes 0 / 32 -> +0 / +64
    s_nop 6
    ds_write_b128 v11, {vr(ACC+8,4)}
    ds_write_b128 v11, {vr(ACC+12,4)} offset:16
    s_mov_b32 exec_lo, 1
    s_mov_b32 exec_hi, 1
    s_nop 1
    ds_write_b128 v13, v[160:163]
    ds_write_b128 v13, v[164:167] offset:16
    ds_write_b128 v13, v[168:171] offset:32
    ds_write_b128 v13, v[172:175] offset:48
    s_mov_b64 exec, -1
    """)
    ST(20)
    k("s_branch L_JOIN2")
    k(f"""
    L_FIN:
    s_call_b64 s[58:59], L_SETUP
    s_setprio 3
    v_and_b32 v104, 7, v1
    v_lshlrev_b32 v104, 5, v104
    v_lshlrev_b32 v12, 5, v1
    v_add_u32 v12, {EX}, v12
    s_mov_b32 s39, {LSPIN}
    L_KC_POLL:
    ds_read_b32 v13, v10 offset:12
    s_sub_u32 s39, s39, 1
    s_cbranch_scc1 L_KC_OUT
    s_waitcnt lgkmcnt(0)
    v_cmp_gt_u32 vcc, 4, v13
    s_cbranch_vccnz L_KC_POLL
    L_KC_OUT:
    global_load_dword v105, v104, s[70:71] sc1
    """)
    k("ds_read_b128 v[96:99], v12 offset:6144\nds_read_b128 v[100:103], v12 offset:6160")
    for a in range(3):
        k(f"ds_read_b128 {vr(64+8*a,4)}, v12 offset:{a*2048}\nds_read_b128 {vr(68+8*a,4)}, v12 offset:{a*2048+16}")
    for a in range(3):
        k(f"s_waitcnt lgkmcnt({4-2*a})")
        for i in range(7): k(f"v_add_f32 v{96+i}, v{96+i}, v{64+8*a+i}")
    for op in ('v_permlane16_swap_b32', 'v_permlane32_swap_b32'):
        k("v_mov_b32 v64, v100\nv_mov_b32 v65, v101\nv_mov_b32 v66, v102\ns_nop 0")
        k(f"{op} v100, v64\n{op} v101, v65\n{op} v102, v66")
        k("v_add_f32 v100, v100, v64\nv_add_f32 v101, v101, v65\nv_add_f32 v102, v102, v66")
    k(f"""
    v_mul_f32 v100, {f32(1/512)}, v100
    v_mul_f32 v101, {f32(1/512)}, v101
    v_fma_f32 v101, -v100, v100, v101
    v_add_f32 v101, {f32(1e-5)}, v101
    v_rsq_f32 v101, v101
    v_and_b32 v12, 15, v1
    v_lshlrev_b32 v13, 2, v12
    v_add_u32 v13, {X2}, v13
    ds_write_b32 v13, v100
    ds_write_b32 v13, v101 offset:64
    ds_write_b32 v13, v102 offset:128
    v_lshrrev_b32 v14, 4, v1
    v_lshlrev_b32 v13, 4, v14
    v_add_u32 v13, {X2}, v13
    ds_read_b128 v[64:67], v13
    ds_read_b128 v[68:71], v13 offset:64
    ds_read_b128 v[72:75], v13 offset:128
    s_lshl_b32 s46, s37, 1
    s_lshr_b32 s47, s38, 2
    s_add_u32 s46, s46, s47
    s_lshl_b32 s46, s46, 11
    s_bfe_u32 s47, s38, 0x10001
    v_and_b32 v13, 1, v14
    v_lshrrev_b32 v14, 1, v14
    s_bitcmp1_b32 s38, 0
    s_cbranch_scc1 L_FV
    s_lshl_b32 s47, s47, 8
    v_lshlrev_b32 v13, 9, v13
    v_lshl_add_u32 v13, v12, 4, v13
    v_lshl_add_u32 v13, v14, 3, v13
    s_waitcnt lgkmcnt(0)
    """)
    for r in range(4): k(f"v_fma_f32 v{96+r}, -v100, v{72+r}, v{96+r}")
    for r in range(4): k(f"v_mul_f32 v{96+r}, v{96+r}, v101")
    k(f"""
    s_branch L_FS
    L_FV:
    s_lshl_b32 s47, s47, 9
    s_add_u32 s47, s47, 1024
    v_lshlrev_b32 v13, 3, v13
    v_lshl_add_u32 v13, v12, 4, v13
    v_lshl_add_u32 v13, v14, 8, v13
    s_waitcnt lgkmcnt(0)
    """)
    for r in range(4): k(f"v_fma_f32 v{96+r}, -v{64+r}, v102, v{96+r}")
    for r in range(4): k(f"v_mul_f32 v{96+r}, v{96+r}, v{68+r}")
    k(f"""
    L_FS:
    s_add_u32 s46, s46, s47
    v_cvt_pk_bf16_f32 v96, v96, v97
    v_cvt_pk_bf16_f32 v97, v98, v99
    s_mov_b32 s39, {SPIN}
    v_min_u32 v96, -2, v96
    v_min_u32 v97, -2, v97
    v_min_u32 v100, -2, v100
    v_min_u32 v101, -2, v101
    s_lshl_b32 s47, s37, 9
    s_lshr_b32 s48, s38, 1
    s_lshl_b32 s48, s48, 7
    s_add_u32 s47, s47, s48
    s_add_u32 s47, s47, {STAT1}
    v_lshlrev_b32 v12, 3, v12
    s_bitcmp1_b32 s38, 0
    s_cselect_b32 s48, 0, 0xffff
    s_mov_b32 s44, 0
    L_KVST:
    buffer_store_dwordx2 v[96:97], v13, s[28:31], s46 offen sc1
    s_cmp_eq_u32 s48, 0
    s_cbranch_scc1 L_KVS2
    s_mov_b64 exec, 0xffff
    buffer_store_dwordx2 v[100:101], v12, s[28:31], s47 offen sc1
    s_mov_b64 exec, -1
    L_KVS2:
    s_cmp_lg_u32 s44, 0
    s_cbranch_scc1 L_KVS3
    """)
    ST(2)
    k(f"""
    s_mov_b32 s44, 1
    s_waitcnt vmcnt(2)
    s_cmp_lg_u32 s48, 0
    s_cbranch_scc1 L_F0_POLL
    s_waitcnt vmcnt(1)
    L_F0_POLL:
    v_cmp_ne_u32 vcc, 1, v105
    s_sub_u32 s39, s39, 1
    s_cbranch_scc1 L_KVST
    s_cbranch_vccz L_KVST
    global_load_dword v105, v104, s[70:71] sc1
    s_waitcnt vmcnt(0)
    s_branch L_F0_POLL
    L_KVS3:
    v_mov_b32 v13, 8
    ds_write_b32 v10, v13 offset:8    ; F0 seen
    s_waitcnt vmcnt(0)
    """)
    signal(0, 12, 13)
    SF(14)
    k("s_setprio 0\ns_branch L_JOIN")
    k("L_W7:")
    k.srd(32, 12, 524288)
    k(f"""
    s_and_b32 s46, s2, 31
    s_lshl_b32 s46, s46, 5
    s_lshl_b32 s47, s38, 16
    s_add_u32 s46, s46, s47
    v_and_b32 v28, 15, v1
    v_lshlrev_b32 v28, 1, v28
    v_lshrrev_b32 v29, 4, v1
    v_lshl_add_u32 v28, v29, 13, v28
    """)
    for e in (0, 1, 4, 5, 2, 3, 6, 7, 8, 9, 12, 13, 10, 11, 14, 15):
        row = 32*(e>>3) + 4*((e>>1)&1) + 2*((e>>2)&1) + (e&1)
        if row & 3 == 0: k(f"s_add_u32 s47, s46, {row*1024}")
        k(f"buffer_load_ushort v{112+e}, v28, s[32:35], s47 offen offset:{(row&3)*1024}")
    k("s_call_b64 s[58:59], L_SETUP")
    k("s_waitcnt vmcnt(0)")
    for i in range(8): k(f"v_lshl_or_b32 v{80+i}, v{113+2*i}, 16, v{112+2*i}")
    k(f"""
    s_lshl_b32 s46, s2, 11
    s_add_u32 s46, s46, {WOT}
    buffer_store_dwordx4 v[80:83], v2, s[28:31], s46 offen sc1
    buffer_store_dwordx4 v[84:87], v2, s[28:31], s46 offen offset:1024 sc1
    s_mov_b32 s39, {LSPIN}
    L_W7W:
    ds_read_b32 v12, v10 offset:8
    s_sub_u32 s39, s39, 1
    s_cbranch_scc1 L_W7G
    s_waitcnt lgkmcnt(0)
    v_cmp_eq_u32 vcc, 0, v12
    s_cbranch_vccnz L_W7W
    L_W7G:
    s_waitcnt vmcnt(0)
    """)
    signal(1024, 12, 13)
    k(f"""
    s_branch L_JOIN
    L_XTRA:
    """)
    SF(10)
    k("s_call_b64 s[58:59], L_SETUP")
    for d in range(depth - 1, -1, -1):
        k(f"s_waitcnt vmcnt({8*d})\nds_write_b32 v10, v12\nv_add_u32 v12, 1, v12")
    SF(11)
    k(f"v_mov_b32 v10, {FLG}")
    k("L_JOIN:")
    k(f"""
    s_mov_b32 s39, {LSPIN}
    L_HWAIT:
    ds_read_b96 v[12:14], v10
    s_sub_u32 s39, s39, 1
    s_cbranch_scc1 L_HGO
    s_waitcnt lgkmcnt(0)
    v_min3_u32 v12, v12, v13, v14
    v_cmp_gt_u32 vcc, 7, v12
    s_cbranch_vccnz L_HWAIT
    L_HGO:
    """)
    SF(13)
    k(f"v_mov_b32 v106, 0\nv_mov_b32 v107, 0\ns_mov_b32 s39, {SPIN}\nL_KH_POLL:")
    batchH()
    k("s_waitcnt vmcnt(0)")
    chk(96, 36, 29)
    k(f"""
    s_sub_u32 s39, s39, 1
    s_cbranch_scc1 L_KH_OUT
    s_cbranch_vccnz L_KH_POLL
    L_KH_OUT:
    v_and_b32 v12, 15, v1
    v_lshlrev_b32 v12, 7, v12
    v_add_u32 v15, {CNTB}, v12
    """)
    ST(4)
    k(f"""
    s_barrier
    ds_write_b128 v30, v[96:99]
    ds_write_b128 v30, v[108:111] offset:1024
    ds_write_b128 v28, v[16:19]
    ds_write_b128 v30, v[100:103] offset:{4*TP}
    ds_write_b128 v30, v[112:115] offset:{4*TP+1024}
    ds_write_b128 v30, v[116:119] offset:{8*TP}
    ds_write_b128 v30, v[120:123] offset:{8*TP+1024}
    ds_write_b128 v30, v[124:127] offset:{12*TP}
    ds_write_b128 v30, v[128:131] offset:{12*TP+1024}
    global_load_dword v31, v15, s[72:73] sc1
    v_mov_b32 v30, v15
    ds_read_b128 {vr(ACC,4)}, v11
    ds_read_b128 {vr(ACC+4,4)}, v11 offset:16
    s_waitcnt lgkmcnt(2)
    s_barrier
    s_branch L_LAG
    L_JOIN2:
    s_waitcnt lgkmcnt(0)
    s_barrier
    """)
    ST(18)
    k(f"s_mov_b32 s39, {SPIN}\nL_KV_POLL:\ns_waitcnt vmcnt(0)")
    chk(96, 10, 29)
    k("s_sub_u32 s39, s39, 1\ns_cbranch_scc1 L_QFIN\ns_cbranch_vccz L_QFIN")
    batchC()
    k(f"""
    s_branch L_KV_POLL
    L_QFIN:
    ds_read_b128 v[32:35], v9
    ds_read_b128 v[36:39], v9 offset:16
    ds_read_b128 v[40:43], v9 offset:128
    ds_read_b128 v[44:47], v9 offset:144
    v_mul_f32 v105, {f32(CSCALE)}, v105
    """)
    for i in range(16): k(f"v_mov_b32 v{O+i}, 0")
    k("s_waitcnt lgkmcnt(0)")
    for i in range(0, 8, 2): k(f"v_pk_add_f32 {vr(32+i,2)}, {vr(32+i,2)}, {vr(40+i,2)}")
    for i in range(8): k(f"v_fma_f32 v{ACC+i}, -v104, v{32+i}, v{ACC+i}")
    for i in range(8): k(f"v_mul_f32 v{ACC+i}, v{ACC+i}, v105")
    for i in range(4): k(f"v_cvt_pk_bf16_f32 v{Q+i}, v{ACC+2*i}, v{ACC+2*i+1}")
    k(f"""
    s_cmp_eq_u32 s51, 0
    s_nop 0
    v_mfma_f32_32x32x16_bf16 {vr(SA,16)}, v[96:99], {vr(Q,4)}, 0
    v_mfma_f32_32x32x16_bf16 {vr(SB,16)}, v[100:103], {vr(Q,4)}, 0
    s_cbranch_scc0 L_ST0
    s_barrier
    L_ST0:
    ds_read_b128 {vr(KF,4)}, v{AK}
    ds_read_b128 {vr(VH,4)}, v{AV}
    s_nop 7
    v_max_f32 v28, v{SA}, v{SA+1}
    """)
    for i in range(1, 16): k(f"v_max3_f32 v28, v28, v{SA+2*i}, v{SA+2*i+1}")
    allreduce_halves(k, 28, 29, 'v_max_f32')
    k(f"v_sub_f32 v{C}, {f32(-OFF)}, v28")
    for i in range(1, 16): k(f"v_mov_b32 v{C+i}, v{C}")
    k(f"""
    s_cmp_eq_u32 s51, 0
    s_waitcnt lgkmcnt(1)
    v_mfma_f32_32x32x16_bf16 {vr(SA,16)}, {vr(KF,4)}, {vr(Q,4)}, {vr(C,16)}
    ds_read_b128 {vr(KF,4)}, v{AK} offset:{TP}
    ds_read_b128 {vr(VL,4)}, v{AV}
    """)
    for i in range(8): k(f"v_mov_b32 v{SB+8+i}, 0")
    k("s_cbranch_scc0 L_LAG2\ns_nop 0")
    ST(5)
    RES = 96
    def resload(n):
        if now in (True, 'res'): return
        b, q = n >> 1, n & 1
        k(f"s_add_u32 s48, s42, {b*65536 + q*4096}")
        for o in range(4): k(f"buffer_load_dwordx4 {vr(RES+32*b+16*q+4*o,4)}, v2, s[28:31], s48 offen offset:{o*1024} sc1")
    def k6(q):
        k(f"s_lshl_b32 s47, s36, 13\ns_add_u32 m0, s47, {q*4096}\ns_add_u32 s48, s42, {6*65536 + q*4096}")
        for o in range(4): k(f"buffer_load_dwordx4 v2, s[28:31], s48 offen offset:{o*1024} sc1 lds")
    call = "s_call_b64 s[58:59], L_BODY"
    for it in range(16):
        k(call)
        d = it + 1
        if d == 3: SF(16); k("s_barrier")
        if d == prio: k("s_setprio 0")
        if 3 <= d < 13: resload(d - 3)
        if d == free[0]: SF(17); k("s_barrier"); k6(0)
        if d == free[0] + 1: k6(1)
    k(f"""
    L_DONE:
    s_waitcnt lgkmcnt(0)
    v_smfmac_f32_32x32x32_bf16 {vr(O,16)}, {vr(VH,4)}, {vr(SB+8,8)}, v{IDX}
    s_mov_b32 s44, 0
    L_FINISH:
    s_nop 10
    v_mov_b32 v29, v{O+8}
    v_add_f32 v28, abs(v{O}), abs(v{O+1})
    v_add_f32 v28, v28, abs(v{O+2})
    v_permlane32_swap_b32 v{O+8}, v29
    v_rcp_f32 v29, v{O+8}
    v_fmac_f32 v28, {f32(256.0)}, v{O+8}
    """)
    for i in range(3, 8): k(f"v_add_f32 v28, v28, abs(v{O+i})")
    for i in range(8): k(f"v_mul_f32 v{O+i}, v{O+i}, v29")
    k(f"""
    v_mov_b32 v29, 0x7f800000
    v_cmp_nlt_f32 vcc, v28, v29
    s_cmp_lg_u32 s44, 0
    s_cbranch_scc1 L_OK
    s_cbranch_vccnz L_RETRY
    L_OK:
    """)
    for i in range(4): k(f"v_cvt_pk_bf16_f32 v{O+i}, v{O+2*i}, v{O+2*i+1}")
    for i in range(4): k(f"v_min_u32 v{O+i}, -2, v{O+i}")
    k(f"buffer_store_dwordx4 {vr(O,4)}, v3, s[28:31], s56 offen sc1\ns_setprio 0")
    ST(6)
    A, T, LATE = 32, 16, 64
    first = []
    for q in range(2):
        pre = f"s_add_u32 s48, s42, {5*65536 + q*4096}\n"
        for o in range(4): first.append((pre if o == 0 else '') + f"buffer_load_dwordx4 {vr(LATE+16*q+4*o,4)}, v2, s[28:31], s48 offen offset:{o*1024} sc1")
    late = []
    for q in range(2):
        pre = f"s_add_u32 m0, s41, {65536 + q*4096}\ns_add_u32 s48, s42, {7*65536 + q*4096}\n"
        for o in range(4): late.append((pre if o == 0 else '') + f"buffer_load_dwordx4 v2, s[28:31], s48 offen offset:{o*1024} sc1 lds")
    k.srd(20, 60, 1024); k.srd(24, 68, 2097152)
    k(f"buffer_load_dwordx4 v[8:11], v2, s[16:19], s55 offen\nbuffer_load_dwordx4 v[12:15], v2, s[20:23], 0 offen")
    for x in first: k(x)
    k(f"""
    s_lshl_b32 s41, s36, 13
    s_lshl_b32 s46, s53, 13
    s_lshl_b32 s47, s36, 10
    s_add_u32 s46, s46, s47
    s_add_u32 s46, s46, {OB}
    s_add_u32 s47, s47, {AX}
    v_add_u32 v5, s47, v2
    v_add_u32 v6, s41, v2
    v_add_u32 v4, {AX}, v2
    v_bfe_u32 v0, v1, 3, 1
    v_mov_b32 v7, 0x44444444
    v_mov_b32 v3, 0xeeeeeeee
    v_cmp_eq_u32 vcc, 1, v0
    s_mov_b32 s39, {SPIN}
    s_nop 0
    v_cndmask_b32 v7, v7, v3, vcc
    s_barrier
    """)
    ST(7)
    for x in late[:pre_late]: k(x)
    for i in range(16): k(f"v_mov_b32 v{T+i}, 0")
    k(f"""
    L_OP_POLL:
    buffer_load_dwordx4 {vr(A,4)}, v2, s[28:31], s46 offen sc1
    s_sub_u32 s39, s39, 1
    s_cbranch_scc1 L_OP_OUT
    s_waitcnt vmcnt(0)
    v_max3_u32 v{A+4}, v{A}, v{A+1}, v{A+2}
    v_max_u32 v{A+4}, v{A+4}, v{A+3}
    v_cmp_eq_u32 vcc, -1, v{A+4}
    s_cbranch_vccnz L_OP_POLL
    L_OP_OUT:
    s_waitcnt vmcnt(0)
    ds_write_b128 v5, {vr(A,4)}
    """)
    ST(8)
    for x in late[pre_late:]: k(x)
    k(f"""
    v_and_b32 v0, 15, v1
    v_lshlrev_b32 v0, 2, v0
    v_lshrrev_b32 v3, 5, v1
    v_lshl_add_u32 v0, v3, 7, v0
    v_bfe_u32 v3, v1, 4, 1
    v_mul_u32_u24 v3, {4*272}, v3
    s_mul_i32 s46, s36, 8208
    v_add3_u32 v0, v0, v3, s46
    s_mul_i32 s46, s36, 272
    v_lshrrev_b32 v5, 3, v1
    v_mul_u32_u24 v5, 8208, v5
    v_and_b32 v3, 7, v1
    v_lshl_add_u32 v3, v3, 5, s46
    v_add_u32 v3, v3, v5
    s_waitcnt lgkmcnt(0)
    s_barrier
    """)
    ST(9)
    for s in range(8): k(f"ds_read_b128 {vr(A+4*s,4)}, v4 offset:{s*1024}")
    def sm(s, base):
        for i in range(4): k(f"v_smfmac_f32_16x16x64_bf16 {vr(T+4*i,4)}, {vr(A+4*s,4)}, {vr(base+8*i,8)}, v7")
    k("s_waitcnt lgkmcnt(7)"); sm(0, RES)
    k("s_waitcnt lgkmcnt(0)")
    for o in range(8): k(f"ds_read_b128 {vr(RES+4*o,4)}, v6 offset:{o*1024}")
    sm(1, RES+32)
    k("v_add_u32 v6, 65536, v6\ns_waitcnt vmcnt(0)")
    sm(2, RES+64)
    k("s_waitcnt lgkmcnt(4)")
    for o in range(8): k(f"ds_read_b128 {vr(RES+32+4*o,4)}, v6 offset:{o*1024}")
    sm(3, RES+96); sm(4, RES+128); sm(5, LATE)
    k("s_waitcnt lgkmcnt(8)"); sm(6, RES)
    k("s_waitcnt lgkmcnt(0)"); sm(7, RES+32)
    for i in range(4):
        k(f"v_lshlrev_b32 v{48+2*i}, 16, v{8+i}\nv_and_b32 v{49+2*i}, 0xffff0000, v{8+i}")
    ST(10)
    for r in range(4): k(f"v_permlane32_swap_b32 v{T+r}, v{T+8+r}\nv_permlane32_swap_b32 v{T+4+r}, v{T+12+r}")
    for r in range(0, 8, 2): k(f"v_pk_add_f32 {vr(T+r,2)}, {vr(T+r,2)}, {vr(T+8+r,2)}")
    for r in range(4): k(f"ds_write2_b32 v0, v{T+r}, v{T+4+r} offset0:{r*68} offset1:{r*68+16}")
    for i in range(4):
        k(f"v_lshlrev_b32 v{56+2*i}, 16, v{12+i}\nv_and_b32 v{57+2*i}, 0xffff0000, v{12+i}")
    k("s_waitcnt lgkmcnt(0)\ns_barrier\nds_read_b128 v[40:43], v3\nds_read_b128 v[44:47], v3 offset:16")
    k("v_pk_add_f32 v[38:39], v[56:57], v[58:59]\nv_pk_add_f32 v[36:37], v[60:61], v[62:63]\nv_pk_add_f32 v[38:39], v[38:39], v[36:37]\nv_add_f32 v35, v38, v39")
    k("s_waitcnt lgkmcnt(0)")
    for i in range(0, 8, 2): k(f"v_pk_add_f32 {vr(40+i,2)}, {vr(40+i,2)}, {vr(48+i,2)}")
    k("""
    v_pk_add_f32 v[16:17], v[40:41], v[42:43]
    v_pk_mul_f32 v[18:19], v[40:41], v[40:41]
    v_pk_mul_f32 v[20:21], v[40:41], v[56:57]
    v_pk_add_f32 v[16:17], v[16:17], v[44:45]
    v_pk_fma_f32 v[18:19], v[42:43], v[42:43], v[18:19]
    v_pk_fma_f32 v[20:21], v[42:43], v[58:59], v[20:21]
    v_pk_add_f32 v[16:17], v[16:17], v[46:47]
    v_pk_fma_f32 v[18:19], v[44:45], v[44:45], v[18:19]
    v_pk_fma_f32 v[20:21], v[44:45], v[60:61], v[20:21]
    v_pk_fma_f32 v[18:19], v[46:47], v[46:47], v[18:19]
    v_pk_fma_f32 v[20:21], v[46:47], v[62:63], v[20:21]
    v_add_f32 v32, v16, v17
    v_add_f32 v33, v18, v19
    v_add_f32 v34, v20, v21
    """)
    for st in ['quad_perm:[1,0,3,2]', 'quad_perm:[2,3,0,1]', 'row_half_mirror', 'row_mirror', 'row_bcast:15 row_mask:0xa', 'row_bcast:31 row_mask:0xc']:
        for r in (35, 32, 33, 34): k(f"v_add_f32_dpp v{r}, v{r}, v{r} {st}")
    k(f"""
    v_mul_f32 v32, {f32(1/512)}, v32
    v_mul_f32 v33, {f32(1/512)}, v33
    v_fma_f32 v33, -v32, v32, v33
    v_add_f32 v37, {f32(1e-5)}, v33
    v_rsq_f32 v33, v37
    v_fma_f32 v34, -v32, v35, v34
    s_sub_u32 s47, 2047, s54
    v_mul_f32 v34, v34, v33
    v_mul_f32 v35, v32, v33
    v_ashrrev_i32 v36, 31, v34
    v_or_b32 v36, 0x80000000, v36
    v_xor_b32 v34, v34, v36
    v_and_b32 v34, 0xfffff800, v34
    v_or_b32 v34, s47, v34
    v_min_u32 v34, -2, v34
    s_lshl_b32 s46, s36, 2
    s_add_u32 s46, s46, {MISC}
    v_mov_b32 v36, s46
    s_mov_b32 exec_lo, 0
    s_mov_b32 exec_hi, 0x80000000
    ds_write_b32 v36, v34
    s_mov_b64 exec, -1
    v_readlane_b32 s44, v33, 63
    v_readlane_b32 s45, v35, 63
    s_waitcnt lgkmcnt(0)
    s_barrier
    """)
    ST(11)
    k(f"""
    s_cmp_lg_u32 s36, 0
    s_cbranch_scc1 L_NOKEY
    v_mov_b32 v36, {MISC}
    ds_read_b128 v[16:19], v36
    ds_read_b128 v[20:23], v36 offset:16
    s_lshl_b32 s46, s2, 5
    s_add_u32 s46, s46, {KEY2}
    s_waitcnt lgkmcnt(0)
    v_max_u32 v24, v16, v17
    v_min_u32 v25, v16, v17
    """)
    for i in range(2, 8): k(f"v_med3_u32 v25, v24, v25, v{16+i}\nv_max_u32 v24, v24, v{16+i}")
    k(f"""
    s_mov_b64 exec, 1
    buffer_store_dwordx2 v[24:25], v2, s[28:31], s46 offen sc1
    s_mov_b64 exec, -1
    L_NOKEY:
    v_mov_b32 v35, s45
    """)
    for i in range(8): k(f"v_fma_f32 v{48+i}, v{40+i}, s44, -v35")
    for i in range(0, 8, 2): k(f"v_pk_add_f32 {vr(40+i,2)}, {vr(40+i,2)}, {vr(48+i,2)}")
    for i in range(4): k(f"v_cvt_pk_bf16_f32 v{48+i}, v{48+2*i}, v{49+2*i}")
    for i in range(4): k(f"v_min_u32 v{48+i}, -2, v{48+i}")
    k(f"s_add_u32 s46, s55, {HN}\nbuffer_store_dwordx4 v[48:51], v2, s[28:31], s46 offen sc1")
    for i in range(4): k(f"v_cvt_pk_bf16_f32 v{40+i}, v{40+2*i}, v{41+2*i}")
    k(f"""
    v_fma_f32 v33, v37, v33, 1.0      ; 1 + sd
    v_min_u32 v32, -2, v32
    s_lshl_b32 s46, s54, 3
    v_min_u32 v33, -2, v33
    s_add_u32 s46, s46, {STAT - 63*16}
    s_mov_b32 exec_lo, 0
    s_mov_b32 exec_hi, 0x80000000
    buffer_store_dwordx2 v[32:33], v2, s[28:31], s46 offen sc1
    s_mov_b64 exec, -1
    """)
    WD = 65536
    k("s_cmp_lt_u32 s2, 224\ns_cbranch_scc1 L_NOWD")
    k.srd(32, 66, 1792*1024)
    k(f"""
    v_lshrrev_b32 v5, 1, v1
    v_lshlrev_b32 v5, 10, v5
    v_and_b32 v6, 1, v1
    v_lshl_add_u32 v5, v6, 4, v5
    s_mul_i32 s46, s36, {224*1024}
    s_lshl_b32 s58, s37, 5
    s_add_u32 s46, s46, s58
    s_mul_i32 s59, s36, 7168
    s_add_u32 s59, s59, {WD}
    """)
    for s in range(7):
        k(f"s_add_u32 m0, s59, {s*1024}\ns_add_u32 s47, s46, {s*32*1024}\nbuffer_load_dwordx4 v5, s[32:35], s47 offen lds")
    Bf, Af = 64, 128
    k(f"""
    L_NOWD:
    v_lshrrev_b32 v7, 4, v1
    s_cmp_lg_u32 s36, 0
    s_cbranch_scc1 L_TOPW
    v_bfe_u32 v4, v1, 2, 2
    v_lshl_add_u32 v4, v7, 3, v4
    v_lshlrev_b32 v4, 4, v4
    v_and_b32 v6, 1, v1
    v_lshl_add_u32 v4, v6, 3, v4
    v_bfe_u32 v6, v1, 1, 1
    v_lshl_add_u32 v4, v6, 13, v4
    v_add_u32 v4, {FW}, v4
    s_mov_b32 s46, {KEY2}
    s_mov_b32 s47, {KEY2+4096}
    s_mov_b32 s39, {SPIN}
    v_lshlrev_b32 v5, 5, v1
    """)
    for s in range(16):
        k(f"ds_read_b64_tr_b16 {vr(Bf+4*s,2)}, v4 offset:{s*512}\nds_read_b64_tr_b16 {vr(Bf+4*s+2,2)}, v4 offset:{s*512+64}")
        if s % 4 == 3 and s < 15: k("s_waitcnt lgkmcnt(4)")
    ST(12)
    k(f"""
    L_KEY_POLL:
    buffer_load_dwordx2 v[16:17], v5, s[28:31], s46 offen sc1
    buffer_load_dwordx2 v[18:19], v5, s[28:31], s46 offen offset:2048 sc1
    buffer_load_dwordx2 v[20:21], v5, s[28:31], s47 offen sc1
    buffer_load_dwordx2 v[22:23], v5, s[28:31], s47 offen offset:2048 sc1
    s_sub_u32 s39, s39, 1
    s_cbranch_scc1 L_KEY_OUT
    s_waitcnt vmcnt(0)
    v_max3_u32 v24, v16, v17, v18
    v_max3_u32 v25, v19, v20, v21
    v_max3_u32 v24, v24, v22, v23
    v_max_u32 v24, v24, v25
    v_cmp_eq_u32 vcc, -1, v24
    s_cbranch_vccnz L_KEY_POLL
    L_KEY_OUT:
    s_waitcnt vmcnt(0)
    """)
    ST(13)
    top2(k, 16, 8, 24, 25, 26, 27, 44, 45)
    k(f"""
    v_mov_b32 v36, {MISC+64}
    ds_write_b64 v36, v[24:25]
    s_waitcnt lgkmcnt(0)
    L_TOPW:
    s_barrier
    s_cmp_eq_u32 s36, 0
    s_cbranch_scc1 L_HAVETOP
    v_mov_b32 v36, {MISC+64}
    ds_read_b64 v[24:25], v36
    s_waitcnt lgkmcnt(0)
    v_readfirstlane_b32 s44, v24
    v_readfirstlane_b32 s45, v25
    L_HAVETOP:
    s_andn2_b32 s46, 0x7ff, s44
    s_andn2_b32 s47, 0x7ff, s45
    s_cmp_lt_u32 s2, 224
    s_cbranch_scc0 L_DOWN
    s_cmp_eq_u32 s36, 0
    s_cbranch_scc0 L_STOUT
    """)
    ST(14)
    k(f"""
    s_lshl_b32 s58, s46, 10
    s_lshl_b32 s59, s47, 10
    v_and_b32 v4, 1, v1
    v_mov_b32 v5, s58
    v_mov_b32 v6, s59
    v_cmp_eq_u32 vcc, 1, v4
    s_mov_b32 s48, {HN}
    s_mov_b32 s39, {SPIN}
    v_cndmask_b32 v5, v5, v6, vcc
    v_lshl_add_u32 v5, v7, 4, v5
    L_HN_POLL:
    """)
    for s in range(16): k(f"buffer_load_dwordx4 {vr(Af+4*s,4)}, v5, s[28:31], s48 offen offset:{s*64} sc1")
    k("v_mov_b32 v8, 0\nv_mov_b32 v9, 0\nv_mov_b32 v10, 0\nv_mov_b32 v11, 0\nv_mov_b32 v12, 0")
    for s in range(16):
        k(f"s_waitcnt vmcnt({15-s})\nv_mfma_f32_16x16x32_bf16 v[8:11], {vr(Af+4*s,4)}, {vr(Bf+4*s,4)}, v[8:11]")
        k(f"v_max3_u32 v12, v12, v{Af+4*s}, v{Af+4*s+1}\nv_max3_u32 v12, v12, v{Af+4*s+2}, v{Af+4*s+3}")
    k(f"""
    v_cmp_eq_u32 vcc, -1, v12
    s_sub_u32 s39, s39, 1
    s_cbranch_scc1 L_HN_OUT
    s_nop 4
    s_cbranch_vccnz L_HN_POLL
    L_HN_OUT:
    s_nop 4
    """)
    ST(15)
    k(f"""
    v_cmp_lt_u32 vcc, 15, v1
    s_and_b32 s58, s2, 7
    s_mul_i32 s58, s58, 28
    v_cndmask_b32 v8, v8, v9, vcc
    s_lshr_b32 s59, s2, 3
    v_mul_f32 v12, {f32(-LOG2E)}, v8
    v_exp_f32 v12, v12
    v_mov_b32_dpp v14, v8 row_ror:8
    v_add_f32 v12, 1.0, v12
    v_rcp_f32 v12, v12
    v_mul_f32 v8, v8, v14
    s_add_u32 s58, s58, s59
    v_mul_f32 v8, v8, v12
    s_lshl_b32 s58, s58, 7
    s_add_u32 s58, s58, {ACT}
    v_mov_b32_dpp v9, v8 quad_perm:[1,0,3,2]
    v_and_b32 v10, 7, v1
    v_cvt_pk_bf16_f32 v8, v8, v9
    v_lshlrev_b32 v9, 4, v7
    v_min_u32 v8, -2, v8
    v_lshl_add_u32 v9, v10, 1, v9
    s_mov_b64 exec, 0x550055
    buffer_store_dword v8, v9, s[28:31], s58 offen sc1
    s_mov_b64 exec, -1
    L_STOUT:
    s_cmp_eq_u32 s54, s46
    s_cbranch_scc1 L_END
    s_cmp_eq_u32 s54, s47
    s_cbranch_scc1 L_END
    buffer_store_dwordx4 v[40:43], v2, s[24:27], s55 offen
    L_END:
    s_endpgm
    """)
    PX = MISC + 128
    k(f"""
    L_DOWN:
    s_cmp_eq_u32 s54, s46
    s_cbranch_scc1 L_DN1
    s_cmp_eq_u32 s54, s47
    s_cbranch_scc1 L_DN1
    buffer_store_dwordx4 v[40:43], v2, s[24:27], s55 offen
    L_DN1:
    v_bfe_u32 v4, v1, 2, 2
    v_lshl_add_u32 v4, v7, 3, v4
    v_lshlrev_b32 v4, 5, v4
    v_and_b32 v6, 3, v1
    v_lshl_add_u32 v4, v6, 3, v4
    v_add_u32 v4, s59, v4
    v_and_b32 v5, 1, v1
    v_lshlrev_b32 v5, 4, v5
    v_lshl_add_u32 v5, v7, 7, v5
    s_mul_i32 s48, s36, 3584
    s_add_u32 s48, s48, {ACT}
    v_and_b32 v6, 1, v7
    v_mov_b32 v12, s44
    v_mov_b32 v13, s45
    v_cmp_eq_u32 vcc, 1, v6
    s_mov_b32 s39, {SPIN}
    s_add_u32 s41, s58, {HN}
    s_mov_b32 s43, {STAT}
    v_cndmask_b32 v12, v12, v13, vcc
    v_not_b32 v13, v12
    v_and_b32 v13, 0x7ff, v13
    v_and_b32 v14, 14, v1
    v_lshlrev_b32 v14, 1, v14
    v_lshl_add_u32 v15, v13, 10, v14
    v_lshlrev_b32 v20, 3, v13
    v_and_b32 v14, 15, v1
    v_lshlrev_b32 v14, 1, v14
    v_lshl_add_u32 v13, v13, 10, v14
    s_waitcnt vmcnt(0)
    """)
    for s in range(7):
        k(f"ds_read_b64_tr_b16 {vr(Bf+4*s,2)}, v4 offset:{s*1024}\nds_read_b64_tr_b16 {vr(Bf+4*s+2,2)}, v4 offset:{s*1024+128}")
    k(f"""
    v_not_b32 v16, v12
    v_ashrrev_i32 v16, 31, v16
    v_or_b32 v16, 0x80000000, v16
    v_xor_b32 v16, v16, v12
    v_mul_f32 v16, {f32(-LOG2E)}, v16
    v_exp_f32 v16, v16
    s_lshl_b32 s42, s36, 7
    v_add_f32 v16, 1.0, v16
    v_rcp_f32 v16, v16
    s_add_u32 s42, s42, {PX}
    v_and_b32 v4, 15, v1
    v_lshl_add_u32 v4, v4, 2, s42
    v_and_b32 v6, 31, v1
    v_lshlrev_b32 v6, 2, v6
    v_add_u32 v6, {PX}, v6
    s_waitcnt lgkmcnt(0)
    """)
    ST(16)
    k("L_ACT_POLL:\nbuffer_load_dword v14, v15, s[28:31], s41 offen sc1\nbuffer_load_dwordx2 v[18:19], v20, s[28:31], s43 offen sc1")
    for s in range(7): k(f"buffer_load_dwordx4 {vr(Af+4*s,4)}, v5, s[28:31], s48 offen offset:{s*512} sc1")
    k("v_mov_b32 v8, 0\nv_mov_b32 v9, 0\nv_mov_b32 v10, 0\nv_mov_b32 v11, 0\ns_waitcnt vmcnt(7)\nv_max3_u32 v17, v14, v18, v19")
    for s in range(7):
        k(f"s_waitcnt vmcnt({6-s})\nv_mfma_f32_16x16x32_bf16 v[8:11], {vr(Af+4*s,4)}, {vr(Bf+4*s,4)}, v[8:11]")
        k(f"v_max3_u32 v17, v17, v{Af+4*s}, v{Af+4*s+1}\nv_max3_u32 v17, v17, v{Af+4*s+2}, v{Af+4*s+3}")
    k(f"""
    v_cmp_eq_u32 vcc, -1, v17
    s_sub_u32 s39, s39, 1
    s_cbranch_scc1 L_ACT_OUT
    s_nop 2
    s_cbranch_vccnz L_ACT_POLL
    L_ACT_OUT:
    s_nop 2
    """)
    ST(17)
    k(f"""
    ds_write2_b32 v4, v8, v9 offset1:16
    s_waitcnt lgkmcnt(0)
    s_barrier
    s_cmp_lg_u32 s36, 0
    s_cbranch_scc1 L_END
    """)
    for w in range(0, 8, 2): k(f"ds_read2_b32 {vr(24+w,2)}, v6 offset0:{w*32} offset1:{w*32+32}")
    k(f"""
    v_and_b32 v6, 1, v1
    v_lshlrev_b32 v17, 16, v14
    v_and_b32 v14, 0xffff0000, v14
    v_cmp_eq_u32 vcc, 1, v6
    s_waitcnt lgkmcnt(0)
    v_pk_add_f32 v[24:25], v[24:25], v[26:27]
    v_cndmask_b32 v14, v17, v14, vcc
    v_pk_add_f32 v[28:29], v[28:29], v[30:31]
    v_fma_f32 v14, v14, v19, v18
    v_pk_add_f32 v[24:25], v[24:25], v[28:29]
    v_add_f32 v24, v24, v25
    v_fmac_f32 v14, v24, v16
    v_cvt_pk_bf16_f32 v14, v14, v14
    buffer_store_short v14, v13, s[24:27], s58 offen
    s_endpgm
    """)
    k(".p2align 6\nL_BODY:")
    W = {3: ('2', '2', '2'), 2: ('2', '1', None), 1: ('0', None, None)}[waits]
    def wt(i): return f"s_waitcnt lgkmcnt({W[i]})\n" if W[i] else ""
    for u in range(4):
        cur, oth = (SA, SB) if u % 2 == 0 else (SB, SA)
        for e in range(16):
            k(f"v_exp_f32 v{cur+e}, v{cur+e}")
            if e == 1: k(f"{wt(0)}v_smfmac_f32_32x32x32_bf16 {vr(O,16)}, {vr(VH,4)}, {vr(oth+8,8)}, v{IDX}\nds_read_b128 {vr(VH,4)}, v{AH} offset:{u*TP}")
            if e == 5: k(f"{wt(1)}v_mfma_f32_32x32x16_bf16 {vr(oth,16)}, {vr(KF,4)}, {vr(Q,4)}, {vr(C,16)}\nds_read_b128 {vr(KF,4)}, v{AK} offset:{(u+2)*TP}")
            if e == 10: k(f"{wt(2)}v_smfmac_f32_32x32x32_bf16 {vr(O,16)}, {vr(VL,4)}, {vr(cur,8)}, v{IDX}\nds_read_b128 {vr(VL,4)}, v{AV} offset:{(u+1)*TP}")
    k(f"""
    v_add_u32 v{AK}, {4*TP}, v{AK}
    v_add_u32 v{AV}, {4*TP}, v{AV}
    v_add_u32 v{AH}, {4*TP}, v{AH}
    s_setpc_b64 s[58:59]
    """)
    k(f"""
    L_LAG:
    s_mov_b32 s39, {SPIN}
    L_CK_POLL:
    s_waitcnt vmcnt(0)
    v_cmp_gt_u32 vcc, 32, v31
    s_sub_u32 s39, s39, 1
    s_cbranch_scc1 L_CK_OUT
    s_cbranch_vccz L_CK_OUT
    s_sleep 8
    global_load_dword v31, v30, s[72:73] sc1
    s_branch L_CK_POLL
    L_CK_OUT:
    s_add_u32 s46, s36, 12
    s_mul_i32 s47, s46, {TP}
    s_lshl_b32 s46, s46, 11
    s_mov_b32 s48, 12
    L_B2:
    s_mov_b32 m0, s47
    s_addk_i32 s47, {4*TP}
    buffer_load_dwordx4 v2, s[28:31], s46 offen sc1 lds
    buffer_load_dwordx4 v2, s[28:31], s46 offen offset:1024 sc1 lds
    s_addk_i32 s46, 8192
    s_sub_u32 s48, s48, 1
    s_cmp_lg_u32 s48, 0
    s_cbranch_scc1 L_B2
    s_branch L_QFIN
    L_LAG2:
    s_waitcnt vmcnt(0)
    """)
    SF(15)
    k("s_barrier\ns_setprio 1")
    ST(5)
    k(f"""
    v_mov_b32 v28, -1
    v_mov_b32 v29, -1
    v_mov_b32 v30, -1
    v_mov_b32 v31, -1
    s_sub_u32 s47, s56, 256
    buffer_store_dwordx4 v[28:31], v3, s[28:31], s56 offen sc1
    buffer_store_dwordx4 v[28:31], v3, s[28:31], s47 offen sc1
    s_add_u32 s46, s55, {HN}
    s_sub_u32 s47, s46, 4096
    buffer_store_dwordx4 v[28:31], v2, s[28:31], s46 offen sc1
    buffer_store_dwordx4 v[28:31], v2, s[28:31], s47 offen sc1
    s_and_b32 s45, s2, 7
    s_mul_i32 s45, s45, 28
    s_lshr_b32 s48, s2, 3
    s_add_u32 s45, s45, s48           ; cb
    s_cmp_eq_u32 s36, 4
    s_cbranch_scc0 L_NOS4
    s_lshl_b32 s47, s2, 5
    s_add_u32 s47, s47, {KEY2}
    s_lshl_b32 s46, s45, 7
    s_add_u32 s46, s46, {ACT}
    s_lshl_b32 s39, s53, 6
    s_add_u32 s39, s39, {STAT}
    s_mov_b64 exec, 15
    buffer_store_dwordx4 v[28:31], v2, s[28:31], s39 offen sc1
    s_mov_b64 exec, 1
    buffer_store_dwordx2 v[28:29], v2, s[28:31], s47 offen sc1
    s_cmp_ge_u32 s48, 28
    s_cbranch_scc1 L_NOS4B
    s_mov_b64 exec, 3
    buffer_store_dwordx4 v[28:31], v2, s[28:31], s46 offen sc1
    L_NOS4B:
    s_mov_b64 exec, -1
    L_NOS4:
    s_lshl_b32 s45, s45, 4
    s_and_b32 s47, s36, 3
    s_lshl_b32 s43, s47, 11
    s_mul_i32 s47, s47, {128*3584}
    s_add_u32 s45, s45, s47
    v_mul_u32_u24 v24, 3584, v1
    s_cmp_lt_u32 s2, 224
    s_cselect_b32 s34, {512*3584}, 0
    s_mov_b32 s35, 0x00020000
    """)
    def ffn(i):
        if now in (True, 'ffn'): return
        m, hf = i >> 1, i & 1
        k(f"s_mov_b32 s32, s{62+2*m}\ns_mov_b32 s33, s{63+2*m}\ns_add_u32 m0, s43, {FW + m*8192 + hf*1024}\ns_add_u32 s48, s45, {hf*64*3584}\nbuffer_load_dwordx4 v24, s[32:35], s48 offen lds")
    for it in range(16):
        k(call)
        d = it + 1
        if d == 1:
            k("s_waitcnt vmcnt(0)"); signal(2048, 28, 29)
        if d in (1, 2): resload(2*d - 2); resload(2*d - 1)
        if 3 <= d <= 8: resload(d + 1)
        if d == 8:
            k(f"""
            s_lshr_b32 s46, s2, 3
            s_and_b32 s47, s2, 7
            s_cmp_eq_u32 s36, 7
            s_cbranch_scc0 L_WU1
            s_mov_b32 s20, s66
            s_mov_b32 s21, s67
            s_mov_b32 s22, {1792*1024}
            v_lshlrev_b32 v28, 10, v1
            s_mul_i32 s46, s46, {56*1024}
            s_lshl_b32 s47, s47, 7
            s_branch L_WU2
            L_WU1:
            s_cmp_eq_u32 s36, 6
            s_cbranch_scc1 L_WU3
            s_cmp_eq_u32 s36, 4
            s_cselect_b32 s20, s62, s64
            s_cselect_b32 s21, s63, s65
            s_mov_b32 s22, {512*3584}
            v_lshrrev_b32 v28, 2, v1
            v_mul_u32_u24 v28, 3584, v28
            v_and_b32 v29, 3, v1
            v_lshl_add_u32 v28, v29, 7, v28
            s_mul_i32 s46, s46, {16*3584}
            s_mul_i32 s47, s47, 448
            L_WU2:
            s_add_u32 s46, s46, s47
            buffer_load_dword v25, v28, s[20:23], s46 offen
            L_WU3:
            """)
        if d == free[1] - 2:
            k(f"v_and_b32 v30, 7, v1\nv_lshlrev_b32 v30, 7, v30\nv_add_u32 v30, {CNTB+2048}, v30\nglobal_load_dword v31, v30, s[72:73] sc1")
        if d == free[1]:
            k(f"""
            s_mov_b32 s39, {SPIN}
            v_mov_b32 v29, 128
            s_waitcnt vmcnt(4)
            L_C2_POLL:
            v_cmp_gt_u32 vcc, v29, v31
            s_sub_u32 s39, s39, 1
            s_cbranch_scc1 L_C2_OUT
            s_cbranch_vccz L_C2_OUT
            s_sleep 8
            global_load_dword v31, v30, s[72:73] sc1
            s_waitcnt vmcnt(0)
            s_branch L_C2_POLL
            L_C2_OUT:
            """)
            SF(17); k("s_barrier"); k6(0)
        if d == free[1] + 1: k6(1)
        if d == free[1] + 2: ffn(0); ffn(1)
        if d == free[1] + 3: ffn(2); ffn(3)
    k("s_branch L_DONE")
    k(f"""
    L_RETRY:
    s_mov_b32 s44, 1
    v_mov_b32 v28, 0xff800000
    s_mov_b32 s47, 0
    L_RMAX:
    buffer_load_dwordx4 {vr(KF,4)}, v2, s[28:31], s47 offen sc1
    s_add_u32 s47, s47, 2048
    s_waitcnt vmcnt(0)
    v_mfma_f32_32x32x16_bf16 {vr(SA,16)}, {vr(KF,4)}, {vr(Q,4)}, 0
    s_nop 11
    """)
    for i in range(8): k(f"v_max3_f32 v28, v28, v{SA+2*i}, v{SA+2*i+1}")
    k("s_cmp_lt_u32 s47, 0x20000\ns_cbranch_scc1 L_RMAX")
    allreduce_halves(k, 28, 29, 'v_max_f32')
    k(f"v_sub_f32 v{C}, 0, v28")
    for i in range(1, 16): k(f"v_mov_b32 v{C+i}, v{C}")
    for i in range(16): k(f"v_mov_b32 v{O+i}, 0")
    k(f"""
    v_cmp_eq_u32 vcc, 16, v27
    v_mov_b32 v28, 0x3f803f80
    v_mov_b32 v29, 0
    v_cndmask_b32 v28, v29, v28, vcc
    """)
    for i in range(4): k(f"v_mov_b32 v{VL+i}, v28\nv_mov_b32 v{VH+i}, v28")
    k(f"""
    s_mov_b32 s47, 0
    L_RLOOP:
    buffer_load_dwordx4 {vr(KF,4)}, v2, s[28:31], s47 offen sc1
    s_mov_b32 exec_lo, 0xffff
    s_mov_b32 exec_hi, 0xffff
    buffer_load_dwordx4 {vr(VL,4)}, v26, s[28:31], s47 offen sc1
    buffer_load_dwordx4 {vr(VH,4)}, v26, s[28:31], s47 offen offset:512 sc1
    s_mov_b64 exec, -1
    s_add_u32 s47, s47, 2048
    s_waitcnt vmcnt(0)
    v_mfma_f32_32x32x16_bf16 {vr(SA,16)}, {vr(KF,4)}, {vr(Q,4)}, {vr(C,16)}
    s_nop 11
    """)
    for e in range(16): k(f"v_exp_f32 v{SA+e}, v{SA+e}")
    k(f"""
    s_nop 1
    v_smfmac_f32_32x32x32_bf16 {vr(O,16)}, {vr(VL,4)}, {vr(SA,8)}, v{IDX}
    v_smfmac_f32_32x32x32_bf16 {vr(O,16)}, {vr(VH,4)}, {vr(SA+8,8)}, v{IDX}
    s_cmp_lt_u32 s47, 0x20000
    s_cbranch_scc1 L_RLOOP
    s_branch L_FINISH
    L_CODE_END:
    """)
    return k

def build(k, path):
    s = f"; @launch grid=({k.grid},1,1) block=({k.block},1,1) lds={k.lds}\n"
    s += '.amdgcn_target "amdgcn-amd-amdhsa--gfx950"\n.text\n' + k.text() + '.section .rodata,"a"\n.p2align 6\n' + k.desc()
    open(path, 'w').write(s)
    import hz
    print(path, 'hazards:', hz.check(s))
if __name__ == '__main__':
    build(fused(), 'v9.s')
    import stamp
    build(stamp.instrument(fused(stamps=True), 0), 'v9t.s')
    build(stamp.instrument(fused(stamps='front'), 0), 'v9f.s')
```

```python
import re
STAMP = 0x800000
SB = 80; NS = 22
def instrument(k, kidx, cyc=False):
    out = []
    ins = 's_memtime' if cyc else 's_memrealtime'
    def stamp(slot):
        return [f"    {ins} s[76:77]", "    s_waitcnt lgkmcnt(0)", f"    s_mov_b32 s{SB+slot}, s76"]
    out += [f"    s_mov_b32 s{SB+i}, 0" for i in range(NS)]
    out += ["    s_mov_b32 s78, s2", "    v_readfirstlane_b32 s79, v0"] + stamp(0)
    n = 0
    for l in k.L:
        m = re.match(r'\s*; STAMP (\d+)', l)
        if m: out += stamp(int(m.group(1))); continue
        if l.strip() == 's_endpgm':
            n += 1
            out += ["    s_waitcnt vmcnt(0)"] + stamp(NS - 1)
            out += ["    s_cmp_ge_u32 s78, 256", f"    s_cbranch_scc1 SE_{kidx}_{n}", "    s_load_dwordx2 s[74:75], s[0:1], 96",
                    "    s_mov_b64 exec, 1", f"    s_lshl_b32 s78, s78, 10", "    s_lshl_b32 s79, s79, 1", "    s_add_u32 s78, s78, s79", f"    s_add_u32 s78, s78, {STAMP + kidx*262144}", "    v_mov_b32 v0, s78", "    s_waitcnt lgkmcnt(0)"]
            for i in range(NS): out += [f"    v_mov_b32 v1, s{SB+i}", f"    global_store_dword v0, v1, s[74:75] offset:{4*i}"]
            out += [f"SE_{kidx}_{n}:", "    s_endpgm"]
        else: out.append(l)
    k.L = out; k.sgpr = 102
    return k
def addafter(k, pat, slot, nth=0):
    idx = [i for i, l in enumerate(k.L) if pat in l][nth]
    k.L.insert(idx + 1, f'    ; STAMP {slot}')

def instrument_dbg(k, slots):
    out = []
    def stamp(slot):
        return ["    s_memrealtime s[76:77]", "    s_waitcnt lgkmcnt(0)", f"    s_mov_b32 s{SB+slot}, s76"]
    out += [f"    s_mov_b32 s{SB+i}, 0" for i in range(NS)]
    out += ["    s_mov_b32 s78, s2"] + stamp(0)
    n = 0
    for l in k.L:
        m = re.match(r'\s*; STAMP (\d+)', l)
        if m:
            if int(m.group(1)) in slots: out += stamp(int(m.group(1)))
            continue
        if l.strip() == 's_endpgm':
            n += 1
            out += ["    s_waitcnt vmcnt(0)"] + stamp(NS - 1)
            out += ["    s_cmp_ge_u32 s78, 256", f"    s_cbranch_scc1 SE_{n}", "    s_load_dwordx2 s[74:75], s[0:1], 88", "    s_mov_b64 exec, -1",
                    "    v_mbcnt_lo_u32_b32 v0, -1, 0", "    v_lshlrev_b32 v0, 2, v0", f"    s_not_b32 s{SB}, s{SB}", "    v_mov_b32 v1, 0", f"    v_writelane_b32 v1, s{SB}, 1"]
            for i, sl in enumerate(slots): out += [f"    v_writelane_b32 v1, s{SB+sl}, {2+i}"]
            out += ["    s_mov_b64 exec, 0xfffe", "    s_waitcnt lgkmcnt(0)", "    global_atomic_umax v0, v1, s[74:75] sc1", f"SE_{n}:", "    s_endpgm"]
        else: out.append(l)
    k.L = out; k.sgpr = 102
    return k

def instrument_probe(k, slot, mult=4):
    out = []
    def stamp(reg):
        return ["    s_memrealtime s[76:77]", "    s_waitcnt lgkmcnt(0)", f"    s_mov_b32 s{reg}, s76"]
    out += stamp(80) + ["    s_mov_b32 s81, s80"]
    ends = [i for i, l in enumerate(k.L) if l.strip() == 's_endpgm']
    for i, l in enumerate(k.L):
        m = re.match(r'\s*; STAMP (\d+)', l)
        if m:
            if int(m.group(1)) == slot: out += stamp(81)
            continue
        if i == ends[-1]:
            out += ["    s_waitcnt vmcnt(0)"] + stamp(82)
            if slot == 21: out += ["    s_mov_b32 s81, s82"]
            out += ["    s_sub_u32 s81, s81, s80", f"    s_mul_i32 s81, s81, {mult}", "    s_min_u32 s81, s81, 50000", "PRB:", "    s_memrealtime s[76:77]", "    s_waitcnt lgkmcnt(0)",
                    "    s_sub_u32 s83, s76, s82", "    s_cmp_lt_u32 s83, s81", "    s_cbranch_scc1 PRB", "    s_endpgm"]
        else: out.append(l)
    k.L = out; k.sgpr = 102
    return k
```

```python
import sys, struct, math
from gen1 import Kern, vr, f32, allreduce_halves, top2, NAME
KVF = 0; STAT1 = 0x20000; WOT = 0x24000; OB = WOT + 0x80000; HN = OB + 0x200000; STAT = HN + 0x200000
KEY2 = STAT + 0x4000; ACT = KEY2 + 0x2000; CNTB = ACT + 0x8000; WS_SIZE = CNTB + 0x2000
CSCALE = 0.25 * math.log2(math.e)
OFF = 96.0
TP = 2064
SPIN = 20000
LSPIN = 2000000
LOG2E = math.log2(math.e)

def fused(prio=11, stamps=False, codepf=True, free=(14, 10), depth=3, early=0, waits=1, now=False, outmod=' sc1', pa=10, pb=13, spec=False, wu=8, dsl=20, ps=8, hth=0, fat=12):
    k = Kern(NAME + '_kernel', 256, 512, 163840, 256, sgpr=74)
    def ST(n):
        if stamps and not (stamps == 'front' and 7 <= n <= 17): k.L.append(f'    ; STAMP {n}')
    def SF(n):
        if stamps == 'front': k.L.append(f'    ; STAMP {n}')
    XS, WSL, WKV, EX = 0, 65536, 131072, 147456
    X2 = EX + 8192; FLG = X2 + 256; CSX = FLG + 256
    FW = 141440; MISC = 159872; AX = 122880
    Q, KF, VL, VH, IDX, AK, AV, AH, C, SA, SB, O, STG = 4, 8, 12, 16, 20, 21, 22, 23, 32, 48, 64, 80, 96
    ACC = 144
    def chk(base, n, t):
        k(f"v_max3_u32 v{t}, v{base}, v{base+1}, v{base+2}")
        for i in range(3, n - 1, 2): k(f"v_max3_u32 v{t}, v{t}, v{base+i}, v{base+i+1}")
        k(f"v_max_u32 v{t}, v{t}, v{base+n-1}\nv_cmp_eq_u32 vcc, -1, v{t}")
    def setup():
        k(f"""
    s_and_b32 s49, s36, 1
    s_bfe_u32 s50, s36, 0x10001
    s_lshr_b32 s51, s36, 2
    s_mov_b32 s28, s72
    s_mov_b32 s29, s73
    s_mov_b32 s30, {WS_SIZE}
    s_mov_b32 s31, 0x00020000
    s_and_b32 s48, s36, 3
    s_lshl_b32 s47, s48, 11
    v_add_u32 v24, s47, v2
    s_movk_i32 s43, 16384
    v_and_b32 v27, 31, v1             ; d
    v_lshlrev_b32 v25, 3, v27
    s_lshl_b32 s45, s37, 9
    s_lshl_b32 s46, s49, 8
    s_add_u32 s45, s45, s46
    s_add_u32 s45, s45, {STAT1}
    v_lshrrev_b32 v26, 5, v1          ; h
    s_lshl_b32 s52, s50, 1
    s_add_u32 s52, s52, s51
    s_lshl_b32 s46, s50, 8
    s_lshl_b32 s47, s51, 5
    s_add_u32 s46, s46, s47
    s_add_u32 s46, s46, {CSX}
    v_lshl_add_u32 v9, v26, 6, s46
    s_and_b32 s46, s36, 3
    s_lshl_b32 s46, s46, 12
    s_add_u32 s46, s46, {WKV + 2048}
    v_lshl_add_u32 v11, v1, 5, s46
    s_mov_b32 s16, s4
    s_mov_b32 s17, s5
    s_lshl_b32 s53, s37, 3
    s_add_u32 s53, s53, s38           ; octet
    s_lshl_b32 s54, s53, 3
    s_add_u32 s54, s54, s36
    s_lshl_b32 s55, s54, 10
    s_lshl_b32 s56, s49, 15
    s_add_u32 s56, s56, s41
    s_lshl_b32 s39, s38, 10
    s_add_u32 s56, s56, s39
    s_lshl_b32 s39, s52, 8
    s_add_u32 s56, s56, s39
    s_add_u32 s56, s56, {OB}
    s_lshl_b32 s42, s36, 13
    s_add_u32 s42, s42, {WOT}
    v_bfe_u32 v14, v1, 3, 2
    v_lshlrev_b32 v3, 13, v14
    v_lshl_add_u32 v3, v26, 7, v3
    v_and_b32 v14, 7, v1
    v_lshl_add_u32 v3, v14, 4, v3
    s_mul_i32 s47, s48, {TP}
    v_add_u32 v30, s47, v2
    v_and_b32 v14, 15, v1
    v_mul_u32_u24 v28, {4*TP}, v14
    s_add_u32 s48, s47, 2048
    v_add_u32 v28, s48, v28
    v_mov_b32 v16, 0x3f803f80
    v_mov_b32 v17, 0x3f803f80
    v_mov_b32 v18, 0x3f803f80
    v_mov_b32 v19, 0x3f803f80
    v_lshlrev_b32 v26, 8, v26
    v_lshl_add_u32 v26, v27, 4, v26
    v_add_u32 v26, 1024, v26
    v_add_u32 v{AH}, 512, v26
    v_mov_b32 v29, 2048
    v_mov_b32 v31, 0x100000
    v_cmp_eq_u32 vcc, 16, v27
    v_mov_b32 v{IDX}, 0xdddddddd
    v_mov_b32 v{AK}, v2
    v_cndmask_b32 v29, v31, v29, vcc
    v_cmp_gt_u32 vcc, 16, v27
    s_nop 1
    v_cndmask_b32 v{AV}, v29, v26, vcc
    v_cndmask_b32 v{AH}, v29, v{AH}, vcc
    """)
    def batchC():
        k(f"""
        buffer_load_dwordx2 v[104:105], v25, s[28:31], s45 offen sc1
        buffer_load_dwordx4 v[96:99], v24, s[28:31], 0 offen sc1
        buffer_load_dwordx4 v[100:103], v24, s[28:31], s43 offen sc1
        """)
    def batchH():
        k(f"""
        s_movk_i32 s46, 8192
        s_movk_i32 s47, 24576
        buffer_load_dwordx4 v[96:99], v24, s[28:31], 0 offen sc1
        buffer_load_dwordx4 v[108:111], v24, s[28:31], 0 offen offset:1024 sc1
        buffer_load_dwordx4 v[100:103], v24, s[28:31], s46 offen sc1
        buffer_load_dwordx4 v[112:115], v24, s[28:31], s46 offen offset:1024 sc1
        buffer_load_dwordx4 v[116:119], v24, s[28:31], s43 offen sc1
        buffer_load_dwordx4 v[120:123], v24, s[28:31], s43 offen offset:1024 sc1
        buffer_load_dwordx4 v[124:127], v24, s[28:31], s47 offen sc1
        buffer_load_dwordx4 v[128:131], v24, s[28:31], s47 offen offset:1024 sc1
        buffer_load_dwordx2 v[104:105], v25, s[28:31], s45 offen sc1
        """)
    def signal(off, va, vb):
        k(f"""
        s_lshr_b32 s46, s2, 2
        s_lshl_b32 s46, s46, 7
        s_add_u32 s46, s46, {CNTB + off}
        v_mov_b32 v{va}, s46
        v_mov_b32 v{vb}, 1
        s_mov_b64 exec, 1
        global_atomic_add v{va}, v{vb}, s[72:73] sc1
        s_mov_b64 exec, -1
        """)
    k(f"""
    s_cmp_ge_u32 s2, 256
    s_cbranch_scc1 L_END
    s_load_dwordx8 s[4:11], s[0:1], 0
    s_load_dwordx2 s[72:73], s[0:1], 96
    s_load_dwordx4 s[68:71], s[0:1], 80
    s_load_dwordx2 s[12:13], s[0:1], 32
    s_load_dwordx8 s[60:67], s[0:1], 48
    v_lshrrev_b32 v1, 6, v0
    s_and_b32 s37, s2, 7
    v_readfirstlane_b32 s36, v1
    """)
    if codepf:
        k(f"""
        s_getpc_b64 s[58:59]
        L_PC:
        s_lshr_b32 s39, s2, 5
        s_lshr_b32 s38, s36, 1
        s_or_b32 s39, s39, s38
        s_cbranch_scc1 L_NOPF
        v_lshlrev_b32 v4, 7, v0
        v_min_u32 v4, L_CODE_END-L_PC-4, v4
        global_load_dword v5, v4, s[58:59]
        L_NOPF:
        """)
    k(f"""
    s_lshl_b32 s37, s37, 2
    s_bfe_u32 s39, s2, 0x20003
    s_add_u32 s37, s37, s39           ; g
    s_lshr_b32 s38, s2, 5             ; j
    v_and_b32 v1, 63, v0              ; lane
    v_lshlrev_b32 v2, 4, v1           ; lane*16
    s_lshl_b32 s41, s37, 16           ; g*65536
    v_mov_b32 v10, {FLG}
    s_mov_b32 s18, 2097152
    s_mov_b32 s19, 0x00020000
    s_mov_b32 s23, 0x00020000
    s_cmp_ge_u32 s36, 4
    s_cbranch_scc1 L_HELP
    v_and_b32 v12, 15, v1
    s_lshr_b32 s45, s38, 1
    s_lshl_b32 s45, s45, 14
    s_lshl_b32 s46, s36, 8
    s_add_u32 s45, s45, s46
    s_add_u32 s45, s45, s41
    v_and_b32 v14, 48, v1
    v_lshl_add_u32 v12, v12, 10, v14
    s_lshl_b32 s46, s36, 12
    s_add_u32 s47, s46, {WKV}
    s_mov_b32 m0, s47
    s_movk_i32 s22, 16384
    s_bitcmp1_b32 s38, 0
    s_waitcnt lgkmcnt(0)
    s_cselect_b32 s20, s10, s8
    s_cselect_b32 s21, s11, s9
    s_mov_b32 s16, s4
    s_mov_b32 s17, s5
    """)
    for st in range(4):
        k(f"buffer_load_dwordx4 {vr(64+4*st,4)}, v12, s[16:19], s45 offen offset:{st*64}")
        k(f"buffer_load_dwordx4 v2, s[20:23], s46 offen offset:{st*1024} lds")
    k(f"""
    s_barrier
    s_branch L_COMP
    L_HELP:
    v_mov_b32 v16, 0
    v_mov_b32 v17, 0
    v_mov_b32 v18, 0
    v_mov_b32 v19, 0
    ds_write_b128 v10, v[16:19]
    s_cmp_ge_u32 s36, 6
    s_cbranch_scc1 L_H67
    v_lshrrev_b32 v12, 3, v1
    v_and_b32 v13, 7, v1
    v_lshrrev_b32 v14, 1, v12
    s_lshl_b32 s45, s37, 1
    s_add_u32 s45, s45, s38
    s_mov_b32 s57, 0
    s_cmp_eq_u32 s36, 4
    s_cbranch_scc1 L_IS0
    v_and_b32 v14, 1, v14
    v_lshlrev_b32 v14, 2, v14
    v_add_u32 v10, 4, v10
    L_IS0:
    v_xor_b32 v15, v14, v13
    v_lshlrev_b32 v15, 4, v15
    v_lshl_add_u32 v28, v12, 10, v15
    s_cselect_b32 s39, 64, 0
    v_xor_b32 v29, s39, v28
    v_add_u32 v29, 8192, v29
    v_mov_b32 v12, 1
    s_cselect_b32 s22, s18, 524288
    s_cselect_b32 s43, 7, 16
    s_cselect_b32 s44, {XS}, {WSL}
    s_waitcnt lgkmcnt(0)
    s_cselect_b32 s20, s4, s6
    s_cselect_b32 s21, s5, s7
    s_cselect_b32 s42, s41, 0
    s_cselect_b32 s39, 0, s38
    s_lshl_b32 s39, s39, 7
    s_add_u32 s42, s42, s39
    """)
    if not early: k("s_barrier")
    SF(12)
    k(f"""
    L_ISL:
    s_cmp_lt_u32 s57, {depth}
    s_cbranch_scc1 L_IS2
    s_waitcnt vmcnt({8*(depth-1)})
    ds_write_b32 v10, v12
    v_add_u32 v12, 1, v12
    L_IS2:
    s_add_u32 s46, s45, s57
    s_and_b32 s46, s46, 7
    s_lshl_b32 s46, s46, s43
    s_add_u32 s46, s46, s42
    s_mov_b32 m0, s44
    """)
    for gi in range(0, 8, 2):
        k("s_nop 0\nbuffer_load_dwordx4 v28, s[20:23], s46 offen lds\ns_addk_i32 m0, 1024\ns_nop 0\nbuffer_load_dwordx4 v29, s[20:23], s46 offen lds\ns_addk_i32 m0, 1024\ns_addk_i32 s46, 16384")
    k(f"""
    s_addk_i32 s44, 8192
    s_add_u32 s57, s57, 1
    """)
    if early: k(f"s_cmp_eq_u32 s57, {early}\ns_cbranch_scc0 L_IS3\ns_barrier\nL_IS3:")
    k(f"""
    s_cmp_lt_u32 s57, 8
    s_cbranch_scc1 L_ISL
    s_branch L_XTRA
    L_H67:
    s_mov_b32 s30, {WS_SIZE}
    s_mov_b32 s31, 0x00020000
    s_lshr_b32 s39, s2, 3
    s_xor_b32 s46, s36, 7
    s_or_b32 s39, s39, s46
    s_waitcnt lgkmcnt(0)
    s_mov_b32 s28, s72
    s_mov_b32 s29, s73
    s_cbranch_scc1 L_H6
    v_mov_b32 v24, -1
    v_mov_b32 v25, -1
    v_mov_b32 v26, -1
    v_mov_b32 v27, -1
    s_mul_i32 s39, s2, 18432
    s_mov_b32 s46, 6
    L_INI:
    buffer_store_dwordx4 v[24:27], v2, s[28:31], s39 offen sc1
    buffer_store_dwordx4 v[24:27], v2, s[28:31], s39 offen offset:1024 sc1
    buffer_store_dwordx4 v[24:27], v2, s[28:31], s39 offen offset:2048 sc1
    s_addk_i32 s39, 3072
    s_sub_u32 s46, s46, 1
    s_cmp_lg_u32 s46, 0
    s_cbranch_scc1 L_INI
    s_lshl_b32 s39, s2, 10
    s_add_u32 s39, s39, {CNTB}
    buffer_store_dwordx4 v[16:19], v2, s[28:31], s39 offen sc1
    s_setprio 3
    s_barrier
    v_mov_b32 v12, 1
    s_lshl_b32 s39, s2, 5
    v_mov_b32 v13, s39
    s_mov_b64 exec, 1
    s_waitcnt vmcnt(0)
    """)
    ST(19)
    k(f"""
    global_store_dword v13, v12, s[70:71] sc1
    s_mov_b64 exec, -1
    s_setprio 0
    s_branch L_W7
    L_H6:
    s_barrier
    s_cmp_eq_u32 s36, 6
    s_cbranch_scc1 L_FIN
    s_branch L_W7
    L_SETUP:
    """)
    setup()
    k(f"""
    s_setpc_b64 s[58:59]
    L_COMP:
    s_and_b32 s49, s36, 1             ; th
    s_bfe_u32 s50, s36, 0x10001       ; hp
    s_mov_b32 s40, 0x3f803f80
    v_lshrrev_b32 v13, 4, v1
    v_bfe_u32 v14, v1, 2, 2
    v_lshl_add_u32 v12, v13, 3, v14
    v_and_b32 v15, 3, v1
    v_lshlrev_b32 v15, 3, v15
    v_lshl_add_u32 v12, v12, 5, v15
    v_add_u32 v114, s47, v12          ; Wkv tr address
    v_and_b32 v12, 31, v1
    s_lshl_b32 s39, s49, 5
    v_add_u32 v12, s39, v12           ; t
    v_bfe_u32 v13, v12, 1, 3
    v_lshrrev_b32 v15, 5, v1          ; h
    v_xor_b32 v13, v13, v15
    v_lshlrev_b32 v13, 4, v13
    v_lshlrev_b32 v12, 7, v12
    v_add_u32 v4, v12, v13
    v_xor_b32 v6, 64, v4
    v_xor_b32 v7, 0x60, v4
    v_lshl_add_u32 v13, v15, 3, v14
    v_lshrrev_b32 v14, 1, v14
    v_lshlrev_b32 v14, 2, v14
    v_bfe_u32 v15, v1, 4, 1
    v_lshlrev_b32 v15, 1, v15
    v_bfe_u32 v8, v1, 1, 1
    v_add_u32 v15, v15, v8
    s_lshl_b32 s48, s50, 2
    v_add_u32 v15, s48, v15
    v_xor_b32 v15, v15, v14
    v_lshlrev_b32 v15, 4, v15
    v_lshl_add_u32 v8, v13, 7, v15
    v_and_b32 v15, 1, v1
    v_lshl_add_u32 v8, v15, 3, v8
    v_add_u32 v8, {WSL}, v8
    s_lshl_b32 s46, s36, 11
    s_add_u32 s46, s46, {EX}
    v_lshl_add_u32 v12, v1, 5, s46
    v_mov_b32 v115, 1
    """)
    k("s_call_b64 s[58:59], L_SETUP")
    for i in range(32): k(f"v_mov_b32 v{ACC+i}, 0")
    for i in range(4): k(f"v_mov_b32 v{176+i}, s40")
    for i in range(8): k(f"v_mov_b32 v{96+i}, 0")
    k("s_waitcnt vmcnt(0)\nv_xor_b32 v5, 32, v4")
    ST(1)
    for st in range(4):
        k(f"ds_read_b64_tr_b16 {vr(80+4*st,2)}, v114 offset:{st*1024}\nds_read_b64_tr_b16 {vr(82+4*st,2)}, v114 offset:{st*1024+128}")
    for i in range(16): k(f"v_dot2c_f32_bf16 v100, s40, v{64+i}\nv_dot2c_f32_bf16 v101, v{64+i}, v{64+i}")
    k("s_waitcnt lgkmcnt(0)\ns_bitcmp1_b32 s38, 0\ns_cbranch_scc1 L_VM")
    for st in range(4): k(f"v_mfma_f32_16x16x32_bf16 v[96:99], {vr(80+4*st,4)}, {vr(64+4*st,4)}, v[96:99]")
    k("s_branch L_KM\nL_VM:")
    for st in range(4): k(f"v_mfma_f32_16x16x32_bf16 v[96:99], {vr(64+4*st,4)}, {vr(80+4*st,4)}, v[96:99]")
    k("L_KM:")
    for i in range(16): k(f"v_dot2c_f32_bf16 v{102+(i&1)}, s40, v{80+i}")
    k(f"""
    ds_write_b128 v12, v[96:99]
    s_nop 1
    v_add_f32 v102, v102, v103
    ds_write_b128 v12, v[100:103] offset:16
    s_mov_b64 exec, 1
    ds_add_u32 v10, v115 offset:12
    s_mov_b64 exec, -1
    """)
    def qwait(tag):
        k(f"""
        s_cmp_lt_u32 s57, s58
        s_cbranch_scc1 L_QGO{tag}
        L_QWAIT{tag}:
        ds_read_b64 v[12:13], v10
        s_sub_u32 s39, s39, 1
        s_cbranch_scc1 L_QGO{tag}
        s_waitcnt lgkmcnt(0)
        v_min_u32 v12, v12, v13
        s_nop 0
        v_readfirstlane_b32 s58, v12
        s_cmp_lt_u32 s57, s58
        s_cbranch_scc0 L_QWAIT{tag}
        L_QGO{tag}:
        s_add_u32 s57, s57, 1
        """)
    def qrd(X, W, off, sp):
        k(f"ds_read_b128 {vr(X+4*sp,4)}, v{4+sp} offset:{off}")
        k(f"ds_read_b64_tr_b16 {vr(W+4*sp,2)}, v8 offset:{off+sp*2048}")
        k(f"ds_read_b64_tr_b16 {vr(W+2+4*sp,2)}, v8 offset:{off+sp*2048+512}")
    def qmf(X, W, sp): k(f"v_mfma_f32_32x32x16_bf16 {vr(ACC,16)}, {vr(W+4*sp,4)}, {vr(X+4*sp,4)}, {vr(ACC,16)}")
    def qcs(W, par, tag):
        k(f"s_cmp_eq_u32 s49, {par}\ns_cbranch_scc0 L_QCS{tag}")
        for sp in range(4): k(f"v_mfma_f32_32x32x16_bf16 v[160:175], {vr(W+4*sp,4)}, v[176:179], v[160:175]")
        k(f"L_QCS{tag}:")
    k(f"s_mov_b32 s57, 0\ns_mov_b32 s58, 0\ns_mov_b32 s39, {LSPIN}")
    SF(7); qwait('P'); SF(8)
    for sp in range(4): qrd(32, 48, 0, sp)
    k("L_QLOOP:")
    qwait('A')
    for sp in range(4): k("s_waitcnt lgkmcnt(9)"); qmf(32, 48, sp); qrd(64, 80, 8192, sp)
    for i in range(5): k(f"v_add_u32 v{4+i}, 16384, v{4+i}")
    qcs(48, 0, 'A')
    k("s_cmp_eq_u32 s57, 8\ns_cbranch_scc1 L_QLAST")
    qwait('B')
    for sp in range(4): k("s_waitcnt lgkmcnt(9)"); qmf(64, 80, sp); qrd(32, 48, 0, sp)
    qcs(80, 1, 'B')
    k("s_branch L_QLOOP\nL_QLAST:")
    SF(9)
    k(f"""
    s_setprio 2
    L_QF0:
    ds_read_b32 v12, v10 offset:8
    s_sub_u32 s39, s39, 1
    s_cbranch_scc1 L_QF1
    s_waitcnt lgkmcnt(0)
    v_cmp_eq_u32 vcc, 0, v12
    s_cbranch_vccnz L_QF0
    L_QF1:
    s_waitcnt lgkmcnt(0)
    """)
    qmf(64, 80, 0); batchC()
    for sp in range(1, 4): qmf(64, 80, sp)
    k(f"""
    """)
    qcs(80, 1, 'C')
    k(f"""
    s_lshl_b32 s46, s36, 7
    s_add_u32 s46, s46, {CSX}
    v_lshl_add_u32 v13, v1, 1, s46    ; lanes 0 / 32 -> +0 / +64
    s_nop 6
    ds_write_b128 v11, {vr(ACC+8,4)}
    ds_write_b128 v11, {vr(ACC+12,4)} offset:16
    s_mov_b32 exec_lo, 1
    s_mov_b32 exec_hi, 1
    s_nop 1
    ds_write_b128 v13, v[160:163]
    ds_write_b128 v13, v[164:167] offset:16
    ds_write_b128 v13, v[168:171] offset:32
    ds_write_b128 v13, v[172:175] offset:48
    s_mov_b64 exec, -1
    """)
    ST(20)
    k("s_branch L_JOIN2")
    k(f"""
    L_FIN:
    s_call_b64 s[58:59], L_SETUP
    s_setprio 3
    v_and_b32 v104, 7, v1
    v_lshlrev_b32 v104, 5, v104
    v_lshlrev_b32 v12, 5, v1
    v_add_u32 v12, {EX}, v12
    s_mov_b32 s39, {LSPIN}
    L_KC_POLL:
    ds_read_b32 v13, v10 offset:12
    s_sub_u32 s39, s39, 1
    s_cbranch_scc1 L_KC_OUT
    s_waitcnt lgkmcnt(0)
    v_cmp_gt_u32 vcc, 4, v13
    s_cbranch_vccnz L_KC_POLL
    L_KC_OUT:
    global_load_dword v105, v104, s[70:71] sc1
    """)
    k("ds_read_b128 v[96:99], v12 offset:6144\nds_read_b128 v[100:103], v12 offset:6160")
    for a in range(3):
        k(f"ds_read_b128 {vr(64+8*a,4)}, v12 offset:{a*2048}\nds_read_b128 {vr(68+8*a,4)}, v12 offset:{a*2048+16}")
    for a in range(3):
        k(f"s_waitcnt lgkmcnt({4-2*a})")
        for i in range(7): k(f"v_add_f32 v{96+i}, v{96+i}, v{64+8*a+i}")
    for op in ('v_permlane16_swap_b32', 'v_permlane32_swap_b32'):
        k("v_mov_b32 v64, v100\nv_mov_b32 v65, v101\nv_mov_b32 v66, v102\ns_nop 0")
        k(f"{op} v100, v64\n{op} v101, v65\n{op} v102, v66")
        k("v_add_f32 v100, v100, v64\nv_add_f32 v101, v101, v65\nv_add_f32 v102, v102, v66")
    k(f"""
    v_mul_f32 v100, {f32(1/512)}, v100
    v_mul_f32 v101, {f32(1/512)}, v101
    v_fma_f32 v101, -v100, v100, v101
    v_add_f32 v101, {f32(1e-5)}, v101
    v_rsq_f32 v101, v101
    v_and_b32 v12, 15, v1
    v_lshlrev_b32 v13, 2, v12
    v_add_u32 v13, {X2}, v13
    ds_write_b32 v13, v100
    ds_write_b32 v13, v101 offset:64
    ds_write_b32 v13, v102 offset:128
    v_lshrrev_b32 v14, 4, v1
    v_lshlrev_b32 v13, 4, v14
    v_add_u32 v13, {X2}, v13
    ds_read_b128 v[64:67], v13
    ds_read_b128 v[68:71], v13 offset:64
    ds_read_b128 v[72:75], v13 offset:128
    s_lshl_b32 s46, s37, 1
    s_lshr_b32 s47, s38, 2
    s_add_u32 s46, s46, s47
    s_lshl_b32 s46, s46, 11
    s_bfe_u32 s47, s38, 0x10001
    v_and_b32 v13, 1, v14
    v_lshrrev_b32 v14, 1, v14
    s_bitcmp1_b32 s38, 0
    s_cbranch_scc1 L_FV
    s_lshl_b32 s47, s47, 8
    v_lshlrev_b32 v13, 9, v13
    v_lshl_add_u32 v13, v12, 4, v13
    v_lshl_add_u32 v13, v14, 3, v13
    s_waitcnt lgkmcnt(0)
    """)
    for r in range(4): k(f"v_fma_f32 v{96+r}, -v100, v{72+r}, v{96+r}")
    for r in range(4): k(f"v_mul_f32 v{96+r}, v{96+r}, v101")
    k(f"""
    s_branch L_FS
    L_FV:
    s_lshl_b32 s47, s47, 9
    s_add_u32 s47, s47, 1024
    v_lshlrev_b32 v13, 3, v13
    v_lshl_add_u32 v13, v12, 4, v13
    v_lshl_add_u32 v13, v14, 8, v13
    s_waitcnt lgkmcnt(0)
    """)
    for r in range(4): k(f"v_fma_f32 v{96+r}, -v{64+r}, v102, v{96+r}")
    for r in range(4): k(f"v_mul_f32 v{96+r}, v{96+r}, v{68+r}")
    k(f"""
    L_FS:
    s_add_u32 s46, s46, s47
    v_cvt_pk_bf16_f32 v96, v96, v97
    v_cvt_pk_bf16_f32 v97, v98, v99
    s_mov_b32 s39, {SPIN}
    v_min_u32 v96, -2, v96
    v_min_u32 v97, -2, v97
    v_min_u32 v100, -2, v100
    v_min_u32 v101, -2, v101
    s_lshl_b32 s47, s37, 9
    s_lshr_b32 s48, s38, 1
    s_lshl_b32 s48, s48, 7
    s_add_u32 s47, s47, s48
    s_add_u32 s47, s47, {STAT1}
    v_lshlrev_b32 v12, 3, v12
    s_bitcmp1_b32 s38, 0
    s_cselect_b32 s48, 0, 0xffff
    s_mov_b32 s44, 0
    L_KVST:
    buffer_store_dwordx2 v[96:97], v13, s[28:31], s46 offen sc1
    s_cmp_eq_u32 s48, 0
    s_cbranch_scc1 L_KVS2
    s_mov_b64 exec, 0xffff
    buffer_store_dwordx2 v[100:101], v12, s[28:31], s47 offen sc1
    s_mov_b64 exec, -1
    L_KVS2:
    s_cmp_lg_u32 s44, 0
    s_cbranch_scc1 L_KVS3
    """)
    ST(2)
    k(f"""
    s_mov_b32 s44, 1
    s_waitcnt vmcnt(2)
    s_cmp_lg_u32 s48, 0
    s_cbranch_scc1 L_F0_POLL
    s_waitcnt vmcnt(1)
    L_F0_POLL:
    v_cmp_ne_u32 vcc, 1, v105
    s_sub_u32 s39, s39, 1
    s_cbranch_scc1 L_KVST
    s_cbranch_vccz L_KVST
    global_load_dword v105, v104, s[70:71] sc1
    s_waitcnt vmcnt(0)
    s_branch L_F0_POLL
    L_KVS3:
    v_mov_b32 v13, 8
    ds_write_b32 v10, v13 offset:8    ; F0 seen
    s_waitcnt vmcnt(0)
    """)
    signal(0, 12, 13)
    SF(14)
    k("s_setprio 0\ns_branch L_JOIN")
    k("L_W7:")
    k.srd(32, 12, 524288)
    k(f"""
    s_and_b32 s46, s2, 31
    s_lshl_b32 s46, s46, 5
    s_lshl_b32 s47, s38, 16
    s_add_u32 s46, s46, s47
    v_and_b32 v28, 15, v1
    v_lshlrev_b32 v28, 1, v28
    v_lshrrev_b32 v29, 4, v1
    v_lshl_add_u32 v28, v29, 13, v28
    """)
    for e in (0, 1, 4, 5, 2, 3, 6, 7, 8, 9, 12, 13, 10, 11, 14, 15):
        row = 32*(e>>3) + 4*((e>>1)&1) + 2*((e>>2)&1) + (e&1)
        if row & 3 == 0: k(f"s_add_u32 s47, s46, {row*1024}")
        k(f"buffer_load_ushort v{112+e}, v28, s[32:35], s47 offen offset:{(row&3)*1024}")
    k("s_call_b64 s[58:59], L_SETUP")
    k("s_waitcnt vmcnt(0)")
    for i in range(8): k(f"v_lshl_or_b32 v{80+i}, v{113+2*i}, 16, v{112+2*i}")
    k(f"""
    s_lshl_b32 s46, s2, 11
    s_add_u32 s46, s46, {WOT}
    buffer_store_dwordx4 v[80:83], v2, s[28:31], s46 offen sc1
    buffer_store_dwordx4 v[84:87], v2, s[28:31], s46 offen offset:1024 sc1
    s_mov_b32 s39, {LSPIN}
    L_W7W:
    ds_read_b32 v12, v10 offset:8
    s_sub_u32 s39, s39, 1
    s_cbranch_scc1 L_W7G
    s_waitcnt lgkmcnt(0)
    v_cmp_eq_u32 vcc, 0, v12
    s_cbranch_vccnz L_W7W
    L_W7G:
    s_waitcnt vmcnt(0)
    """)
    signal(0, 12, 13)
    k(f"""
    s_branch L_JOIN
    L_XTRA:
    """)
    SF(10)
    k("s_call_b64 s[58:59], L_SETUP")
    for d in range(depth - 1, -1, -1):
        k(f"s_waitcnt vmcnt({8*d})\nds_write_b32 v10, v12\nv_add_u32 v12, 1, v12")
    SF(11)
    k(f"v_mov_b32 v10, {FLG}")
    k("L_JOIN:")
    k(f"""
    s_mov_b32 s39, {LSPIN}
    L_HWAIT:
    ds_read_b96 v[12:14], v10
    s_sub_u32 s39, s39, 1
    s_cbranch_scc1 L_HGO
    s_waitcnt lgkmcnt(0)
    v_min3_u32 v12, v12, v13, v14
    v_cmp_gt_u32 vcc, {hth or 7}, v12
    s_cbranch_vccnz L_HWAIT
    L_HGO:
    """)
    SF(13)
    k(f"v_mov_b32 v106, 0\nv_mov_b32 v107, 0\ns_mov_b32 s39, {SPIN}\nL_KH_POLL:")
    batchH()
    k("s_waitcnt vmcnt(0)")
    chk(96, 36, 29)
    k(f"""
    s_sub_u32 s39, s39, 1
    s_cbranch_scc1 L_KH_OUT
    s_cbranch_vccnz L_KH_POLL
    L_KH_OUT:
    v_lshlrev_b32 v12, 7, v1
    v_add_u32 v15, {CNTB}, v12
    """)
    ST(4)
    k(f"""
    s_barrier
    ds_write_b128 v30, v[96:99]
    ds_write_b128 v30, v[108:111] offset:1024
    ds_write_b128 v28, v[16:19]
    ds_write_b128 v30, v[100:103] offset:{4*TP}
    ds_write_b128 v30, v[112:115] offset:{4*TP+1024}
    ds_write_b128 v30, v[116:119] offset:{8*TP}
    ds_write_b128 v30, v[120:123] offset:{8*TP+1024}
    ds_write_b128 v30, v[124:127] offset:{12*TP}
    ds_write_b128 v30, v[128:131] offset:{12*TP+1024}
    global_load_dword v31, v15, s[72:73] sc1
    v_mov_b32 v30, v15
    ds_read_b128 {vr(ACC,4)}, v11
    ds_read_b128 {vr(ACC+4,4)}, v11 offset:16
    s_waitcnt lgkmcnt(2)
    s_barrier
    s_branch L_LAG
    L_JOIN2:
    s_waitcnt lgkmcnt(0)
    s_barrier
    """)
    ST(18)
    k(f"s_mov_b32 s39, {SPIN}\nL_KV_POLL:\ns_waitcnt vmcnt(0)")
    chk(96, 10, 29)
    k("s_sub_u32 s39, s39, 1\ns_cbranch_scc1 L_QFIN\ns_cbranch_vccz L_QFIN")
    batchC()
    k(f"""
    s_branch L_KV_POLL
    L_QFIN:
    ds_read_b128 v[32:35], v9
    ds_read_b128 v[36:39], v9 offset:16
    ds_read_b128 v[40:43], v9 offset:128
    ds_read_b128 v[44:47], v9 offset:144
    v_mul_f32 v105, {f32(CSCALE)}, v105
    """)
    for i in range(16): k(f"v_mov_b32 v{O+i}, 0")
    k("s_waitcnt lgkmcnt(0)")
    for i in range(0, 8, 2): k(f"v_pk_add_f32 {vr(32+i,2)}, {vr(32+i,2)}, {vr(40+i,2)}")
    for i in range(8): k(f"v_fma_f32 v{ACC+i}, -v104, v{32+i}, v{ACC+i}")
    for i in range(8): k(f"v_mul_f32 v{ACC+i}, v{ACC+i}, v105")
    for i in range(4): k(f"v_cvt_pk_bf16_f32 v{Q+i}, v{ACC+2*i}, v{ACC+2*i+1}")
    k(f"""
    s_cmp_eq_u32 s51, 0
    s_nop 0
    v_mfma_f32_32x32x16_bf16 {vr(SA,16)}, v[96:99], {vr(Q,4)}, 0
    v_mfma_f32_32x32x16_bf16 {vr(SB,16)}, v[100:103], {vr(Q,4)}, 0
    s_cbranch_scc0 L_ST0
    s_barrier
    L_ST0:
    ds_read_b128 {vr(KF,4)}, v{AK}
    ds_read_b128 {vr(VH,4)}, v{AV}
    s_nop 7
    v_max_f32 v28, v{SA}, v{SA+1}
    """)
    for i in range(1, 16): k(f"v_max3_f32 v28, v28, v{SA+2*i}, v{SA+2*i+1}")
    allreduce_halves(k, 28, 29, 'v_max_f32')
    k(f"v_sub_f32 v{C}, {f32(-OFF)}, v28")
    for i in range(1, 16): k(f"v_mov_b32 v{C+i}, v{C}")
    k(f"""
    s_cmp_eq_u32 s51, 0
    s_waitcnt lgkmcnt(1)
    v_mfma_f32_32x32x16_bf16 {vr(SA,16)}, {vr(KF,4)}, {vr(Q,4)}, {vr(C,16)}
    ds_read_b128 {vr(KF,4)}, v{AK} offset:{TP}
    ds_read_b128 {vr(VL,4)}, v{AV}
    """)
    for i in range(8): k(f"v_mov_b32 v{SB+8+i}, 0")
    k("s_cbranch_scc0 L_LAG2\ns_nop 0")
    ST(5)
    RES = 96
    def resload(n):
        if now in (True, 'res'): return
        b, q = n >> 1, n & 1
        k(f"s_add_u32 s48, s42, {b*65536 + q*4096}")
        for o in range(4): k(f"buffer_load_dwordx4 {vr(RES+32*b+16*q+4*o,4)}, v2, s[28:31], s48 offen offset:{o*1024} sc1")
    def pieces(lo, hi, ldsbase):
        out = []
        i = lo
        while i < hi:
            n = min(hi - i, 4, 8 - (i & 7))
            pre = f"s_add_u32 m0, {ldsbase}, {(i-lo)*1024}\ns_add_u32 s48, s42, {(6 + (i >> 3))*65536 + (i & 7)*1024}\n"
            for o in range(n): out.append((pre if o == 0 else '') + f"buffer_load_dwordx4 v2, s[28:31], s48 offen offset:{o*1024} sc1 lds")
            i += n
        return out
    def k6(q):
        k("s_mul_i32 s47, s36, 10240")
        P = pieces(0, 10, 's47')
        for x in (P[:4] if q == 0 else P[4:]): k(x)
    def ktop():
        k(f"s_lshl_b32 s47, s36, 10\ns_add_u32 s47, s47, 132096")
        for x in pieces(10, 11, 's47'): k(x)
    call = "s_call_b64 s[58:59], L_BODY"
    for it in range(16):
        k(call)
        d = it + 1
        if d == 3: SF(16); k("s_barrier")
        if d == prio: k("s_setprio 0")
        if 3 <= d < 13: resload(d - 3)
        if d == 12: ktop()
        if d == free[0]: SF(17); k("s_barrier"); k6(0)
        if d == free[0] + 1: k6(1)
    k(f"""
    L_DONE:
    s_waitcnt lgkmcnt(0)
    v_smfmac_f32_32x32x32_bf16 {vr(O,16)}, {vr(VH,4)}, {vr(SB+8,8)}, v{IDX}
    s_mov_b32 s44, 0
    L_FINISH:
    s_nop 10
    v_mov_b32 v29, v{O+8}
    v_add_f32 v28, abs(v{O}), abs(v{O+1})
    v_add_f32 v28, v28, abs(v{O+2})
    v_permlane32_swap_b32 v{O+8}, v29
    v_rcp_f32 v29, v{O+8}
    v_fmac_f32 v28, {f32(256.0)}, v{O+8}
    """)
    for i in range(3, 8): k(f"v_add_f32 v28, v28, abs(v{O+i})")
    for i in range(8): k(f"v_mul_f32 v{O+i}, v{O+i}, v29")
    k(f"""
    v_mov_b32 v29, 0x7f800000
    v_cmp_nlt_f32 vcc, v28, v29
    s_cmp_lg_u32 s44, 0
    s_cbranch_scc1 L_OK
    s_cbranch_vccnz L_RETRY
    L_OK:
    """)
    for i in range(4): k(f"v_cvt_pk_bf16_f32 v{O+i}, v{O+2*i}, v{O+2*i+1}")
    for i in range(4): k(f"v_min_u32 v{O+i}, -2, v{O+i}")
    k(f"buffer_store_dwordx4 {vr(O,4)}, v3, s[28:31], s56 offen sc1\ns_setprio 0")
    ST(6)
    A, T, LATE = 32, 16, 64
    first = []
    for q in range(2):
        pre = f"s_add_u32 s48, s42, {5*65536 + q*4096}\n"
        for o in range(4): first.append((pre if o == 0 else '') + f"buffer_load_dwordx4 {vr(LATE+16*q+4*o,4)}, v2, s[28:31], s48 offen offset:{o*1024} sc1")
    k.srd(20, 60, 1024); k.srd(24, 68, 2097152)
    k(f"""
    s_mul_i32 s41, s36, 5120
    s_add_u32 s41, s41, 81920
    s_lshl_b32 s46, s53, 13
    s_lshl_b32 s47, s36, 10
    s_add_u32 s46, s46, s47
    s_add_u32 s46, s46, {OB}
    """)
    seq = first + pieces(11, 16, 's41') + ["buffer_load_dwordx4 v[8:11], v2, s[16:19], s55 offen", "buffer_load_dwordx4 v[12:15], v2, s[20:23], 0 offen"]
    N = len(seq)
    for i, x in enumerate(seq):
        if i == pa: k(f"buffer_load_dwordx4 {vr(A,4)}, v2, s[28:31], s46 offen sc1")
        if i == pb: k(f"buffer_load_dwordx4 {vr(A+28,4)}, v2, s[28:31], s46 offen sc1")
        if i == 8: k("s_barrier"); ST(7)
        k(x)
    k(f"""
    s_add_u32 s48, s47, {AX}
    v_add_u32 v5, s48, v2
    s_mul_i32 s48, s36, 10240
    v_add_u32 v6, s48, v2
    v_add_u32 v4, {AX}, v2
    v_bfe_u32 v0, v1, 3, 1
    v_mov_b32 v7, 0x44444444
    v_mov_b32 v3, 0xeeeeeeee
    v_cmp_eq_u32 vcc, 1, v0
    s_mov_b32 s39, {SPIN}
    s_waitcnt vmcnt({N - pa + 1})
    v_cndmask_b32 v7, v7, v3, vcc
    v_max3_u32 v{A+4}, v{A}, v{A+1}, v{A+2}
    v_max_u32 v{A+4}, v{A+4}, v{A+3}
    v_cmp_eq_u32 vcc, -1, v{A+4}
    s_cbranch_vccz L_OP_OUT
    s_waitcnt vmcnt({N - pb})
    v_mov_b32 v{A}, v{A+28}
    v_mov_b32 v{A+1}, v{A+29}
    v_mov_b32 v{A+2}, v{A+30}
    v_mov_b32 v{A+3}, v{A+31}
    L_OP_POLL:
    v_max3_u32 v{A+4}, v{A}, v{A+1}, v{A+2}
    v_max_u32 v{A+4}, v{A+4}, v{A+3}
    v_cmp_eq_u32 vcc, -1, v{A+4}
    s_sub_u32 s39, s39, 1
    s_cbranch_scc1 L_OP_OUT
    s_cbranch_vccz L_OP_OUT
    buffer_load_dwordx4 {vr(A,4)}, v2, s[28:31], s46 offen sc1
    s_waitcnt vmcnt(0)
    s_branch L_OP_POLL
    L_OP_OUT:
    ds_write_b128 v5, {vr(A,4)}
    """)
    ST(8)
    for i in range(16): k(f"v_mov_b32 v{T+i}, 0")
    k(f"""
    s_add_u32 s47, s47, 132096
    v_add_u32 v5, s47, v2             ; piece 10
    v_add_u32 v3, s41, v2             ; pieces 11..15
    s_waitcnt lgkmcnt(0)
    s_barrier
    """)
    ST(9)
    for s in range(7): k(f"ds_read_b128 {vr(A+4*s,4)}, v4 offset:{s*1024}")
    def sm(s, base, tiles=range(4)):
        for i in tiles: k(f"v_smfmac_f32_16x16x64_bf16 {vr(T+4*i,4)}, {vr(A+4*s,4)}, {vr(base+8*i,8)}, v7")
    k("s_waitcnt lgkmcnt(6)"); sm(0, RES)
    k("s_waitcnt lgkmcnt(0)")
    for o in range(8): k(f"ds_read_b128 {vr(RES+4*o,4)}, v6 offset:{o*1024}")
    sm(1, RES+32)
    for o in range(2): k(f"ds_read_b128 {vr(RES+32+4*o,4)}, v6 offset:{(8+o)*1024}")
    k(f"ds_read_b128 {vr(RES+40,4)}, v5")
    sm(2, RES+64); sm(3, RES+96); sm(4, RES+128)
    k("s_waitcnt lgkmcnt(3)"); sm(6, RES)
    k(f"s_waitcnt vmcnt(2)\nds_read_b128 {vr(A+28,4)}, v4 offset:7168")
    for o in range(5): k(f"ds_read_b128 {vr(RES+44+4*o,4)}, v3 offset:{o*1024}")
    sm(5, LATE)
    k(f"""
    v_and_b32 v0, 15, v1
    v_lshlrev_b32 v0, 2, v0
    v_lshrrev_b32 v3, 5, v1
    v_lshl_add_u32 v0, v3, 7, v0
    v_bfe_u32 v3, v1, 4, 1
    v_mul_u32_u24 v3, {4*272}, v3
    s_mul_i32 s46, s36, 10256
    v_add3_u32 v0, v0, v3, s46
    s_waitcnt lgkmcnt(0)
    """)
    sm(7, RES+32)
    k(f"""
    s_mul_i32 s46, s36, 272
    v_lshrrev_b32 v5, 3, v1
    v_mul_u32_u24 v5, 10256, v5
    v_and_b32 v3, 7, v1
    v_lshl_add_u32 v3, v3, 5, s46
    v_add_u32 v3, v3, v5
    s_waitcnt vmcnt(0)
    """)
    for i in range(4):
        k(f"v_lshlrev_b32 v{48+2*i}, 16, v{8+i}\nv_and_b32 v{49+2*i}, 0xffff0000, v{8+i}")
    ST(10)
    for r in range(4): k(f"v_permlane32_swap_b32 v{T+r}, v{T+8+r}\nv_permlane32_swap_b32 v{T+4+r}, v{T+12+r}")
    for r in range(0, 8, 2): k(f"v_pk_add_f32 {vr(T+r,2)}, {vr(T+r,2)}, {vr(T+8+r,2)}")
    for r in range(4): k(f"ds_write2_b32 v0, v{T+r}, v{T+4+r} offset0:{r*68} offset1:{r*68+16}")
    for i in range(4):
        k(f"v_lshlrev_b32 v{56+2*i}, 16, v{12+i}\nv_and_b32 v{57+2*i}, 0xffff0000, v{12+i}")
    k("s_waitcnt lgkmcnt(0)\ns_barrier\nds_read_b128 v[40:43], v3\nds_read_b128 v[44:47], v3 offset:16")
    k("v_pk_add_f32 v[38:39], v[56:57], v[58:59]\nv_pk_add_f32 v[36:37], v[60:61], v[62:63]\nv_pk_add_f32 v[38:39], v[38:39], v[36:37]\nv_add_f32 v35, v38, v39")
    k("s_waitcnt lgkmcnt(0)")
    for i in range(0, 8, 2): k(f"v_pk_add_f32 {vr(40+i,2)}, {vr(40+i,2)}, {vr(48+i,2)}")
    k("""
    v_pk_add_f32 v[16:17], v[40:41], v[42:43]
    v_pk_mul_f32 v[18:19], v[40:41], v[40:41]
    v_pk_mul_f32 v[20:21], v[40:41], v[56:57]
    v_pk_add_f32 v[16:17], v[16:17], v[44:45]
    v_pk_fma_f32 v[18:19], v[42:43], v[42:43], v[18:19]
    v_pk_fma_f32 v[20:21], v[42:43], v[58:59], v[20:21]
    v_pk_add_f32 v[16:17], v[16:17], v[46:47]
    v_pk_fma_f32 v[18:19], v[44:45], v[44:45], v[18:19]
    v_pk_fma_f32 v[20:21], v[44:45], v[60:61], v[20:21]
    v_pk_fma_f32 v[18:19], v[46:47], v[46:47], v[18:19]
    v_pk_fma_f32 v[20:21], v[46:47], v[62:63], v[20:21]
    v_add_f32 v32, v16, v17
    v_add_f32 v33, v18, v19
    v_add_f32 v34, v20, v21
    """)
    for st in ['quad_perm:[1,0,3,2]', 'quad_perm:[2,3,0,1]', 'row_half_mirror', 'row_mirror', 'row_bcast:15 row_mask:0xa', 'row_bcast:31 row_mask:0xc']:
        for r in (35, 32, 33, 34): k(f"v_add_f32_dpp v{r}, v{r}, v{r} {st}")
    k(f"""
    v_mul_f32 v32, {f32(1/512)}, v32
    v_mul_f32 v33, {f32(1/512)}, v33
    v_fma_f32 v33, -v32, v32, v33
    v_add_f32 v37, {f32(1e-5)}, v33
    v_rsq_f32 v33, v37
    v_fma_f32 v34, -v32, v35, v34
    s_sub_u32 s47, 2047, s54
    v_mul_f32 v34, v34, v33
    v_mul_f32 v35, v32, v33
    v_ashrrev_i32 v36, 31, v34
    v_or_b32 v36, 0x80000000, v36
    v_xor_b32 v34, v34, v36
    v_and_b32 v34, 0xfffff800, v34
    v_or_b32 v34, s47, v34
    v_min_u32 v34, -2, v34
    s_lshl_b32 s46, s36, 2
    s_add_u32 s46, s46, {MISC}
    v_mov_b32 v36, s46
    v_mov_b32 v31, 0
    s_mov_b32 exec_lo, 0
    s_mov_b32 exec_hi, 0x80000000
    ds_write_b32 v36, v34
    ds_write_b32 v36, v31 offset:64
    s_mov_b64 exec, -1
    v_readlane_b32 s44, v33, 63
    v_readlane_b32 s45, v35, 63
    v_readlane_b32 s57, v34, 63
    v_and_b32 v38, 7, v1
    v_lshlrev_b32 v38, 2, v38
    v_add_u32 v38, {MISC}, v38
    s_waitcnt lgkmcnt(0)
    s_barrier
    """)
    ST(11)
    k(f"""
    ds_read_b32 v39, v38
    s_cmp_lg_u32 s36, 0
    s_cbranch_scc1 L_NOKEY
    v_mov_b32 v36, {MISC}
    ds_read_b128 v[16:19], v36
    ds_read_b128 v[20:23], v36 offset:16
    s_lshl_b32 s46, s2, 5
    s_add_u32 s46, s46, {KEY2}
    s_waitcnt lgkmcnt(1)
    v_max_u32 v24, v16, v17
    v_min_u32 v25, v16, v17
    """)
    for i in range(2, 8):
        if i == 4: k("s_waitcnt lgkmcnt(0)")
        k(f"v_med3_u32 v25, v24, v25, v{16+i}\nv_max_u32 v24, v24, v{16+i}")
    k(f"""
    s_mov_b64 exec, 1
    buffer_store_dwordx2 v[24:25], v2, s[28:31], s46 offen sc1
    s_mov_b64 exec, -1
    L_NOKEY:
    v_mov_b32 v35, s45
    """)
    for i in range(8): k(f"v_fma_f32 v{48+i}, v{40+i}, s44, -v35")
    k("s_waitcnt lgkmcnt(0)\nv_cmp_lt_u32 vcc, s57, v39")
    for i in range(0, 8, 2): k(f"v_pk_add_f32 {vr(40+i,2)}, {vr(40+i,2)}, {vr(48+i,2)}")
    k("s_and_b32 s57, vcc_lo, 0xff\ns_bcnt1_i32_b32 s57, s57\ns_cmp_lt_u32 s57, 2\ns_cbranch_scc0 L_NOCAND")
    for i in range(4): k(f"v_cvt_pk_bf16_f32 v{48+i}, v{48+2*i}, v{49+2*i}")
    for i in range(4): k(f"v_min_u32 v{48+i}, -2, v{48+i}")
    k(f"""
    s_add_u32 s46, s55, {HN}
    buffer_store_dwordx4 v[48:51], v2, s[28:31], s46 offen sc1
    v_fma_f32 v33, v37, v33, 1.0      ; 1 + sd
    v_min_u32 v32, -2, v32
    s_lshl_b32 s46, s54, 3
    v_min_u32 v33, -2, v33
    s_add_u32 s46, s46, {STAT - 63*16}
    s_mov_b32 exec_lo, 0
    s_mov_b32 exec_hi, 0x80000000
    buffer_store_dwordx2 v[32:33], v2, s[28:31], s46 offen sc1
    s_mov_b64 exec, -1
    L_NOCAND:
    """)
    for i in range(4): k(f"v_cvt_pk_bf16_f32 v{40+i}, v{40+2*i}, v{41+2*i}")
    k(f"""
    s_cmp_lt_u32 s57, 2
    s_cbranch_scc1 L_CAND
    buffer_store_dwordx4 v[40:43], v2, s[24:27], s55 offen{outmod}
    s_cmp_eq_u32 s36, 0
    s_cbranch_scc1 L_CAND
    s_cmp_lt_u32 s2, 224
    s_cbranch_scc1 L_END
    L_CAND:
    """)
    WD = 65536
    Bf, Af = 64, 128
    k(f"""
    v_lshrrev_b32 v7, 4, v1
    s_lshl_b32 s58, s37, 5
    s_cmp_eq_u32 s36, 0
    s_cbranch_scc1 L_W0
    s_cmp_lt_u32 s2, 224
    s_cbranch_scc1 L_TOPW
    s_branch L_DOWN
    L_W0:
    v_bfe_u32 v4, v1, 2, 2
    v_lshl_add_u32 v4, v7, 3, v4
    v_lshlrev_b32 v4, 4, v4
    v_and_b32 v6, 1, v1
    v_lshl_add_u32 v4, v6, 3, v4
    v_bfe_u32 v6, v1, 1, 1
    v_lshl_add_u32 v4, v6, 13, v4
    v_add_u32 v4, {FW}, v4
    s_mov_b32 s46, {KEY2}
    s_mov_b32 s47, {KEY2+4096}
    s_mov_b32 s39, {SPIN}
    v_lshlrev_b32 v5, 5, v1
    """)
    for s in range(16):
        k(f"ds_read_b64_tr_b16 {vr(Bf+4*s,2)}, v4 offset:{s*512}\nds_read_b64_tr_b16 {vr(Bf+4*s+2,2)}, v4 offset:{s*512+64}")
        if s % 4 == 3 and s < 15: k("s_waitcnt lgkmcnt(4)")
    ST(12)
    def keyload():
        k(f"""
        buffer_load_dwordx2 v[16:17], v5, s[28:31], s46 offen sc1
        buffer_load_dwordx2 v[18:19], v5, s[28:31], s46 offen offset:2048 sc1
        buffer_load_dwordx2 v[20:21], v5, s[28:31], s47 offen sc1
        buffer_load_dwordx2 v[22:23], v5, s[28:31], s47 offen offset:2048 sc1
        """)
    keyload()
    k(f"""
    s_and_b32 s52, s2, 7
    s_mul_i32 s52, s52, 28
    s_lshr_b32 s53, s2, 3
    s_add_u32 s52, s52, s53
    s_lshl_b32 s52, s52, 7
    s_add_u32 s52, s52, {ACT}
    v_and_b32 v10, 7, v1
    v_lshlrev_b32 v6, 4, v7
    v_lshl_add_u32 v6, v10, 1, v6
    s_mov_b32 s49, 0
    s_mov_b32 s50, 0
    s_mov_b32 s48, {HN}
    """)
    for i in range(64): k(f"v_mov_b32 v{Af+i}, 0")
    k(f"""
    L_KEY_POLL:
    s_waitcnt vmcnt(0)
    """)
    for i in range(8): k(f"v_add_u32 v{52+i}, 1, v{16+i}")
    k(f"""
    v_min3_u32 v24, v52, v53, v54
    v_min3_u32 v25, v55, v56, v57
    v_min3_u32 v24, v24, v58, v59
    v_min_u32 v24, v24, v25
    v_cmp_eq_u32 vcc, 0, v24
    s_sub_u32 s39, s39, 1
    s_cselect_b32 s51, 0, 1
    s_cbranch_vccnz L_KEY_MISS
    s_mov_b32 s51, 0
    s_branch L_KEY_TOP
    L_KEY_MISS:
    """)
    keyload()
    if not spec: k("s_cmp_lg_u32 s51, 0\ns_cbranch_scc1 L_KEY_POLL")
    k("L_KEY_TOP:")
    ST(13)
    top2(k, 52, 8, 24, 25, 26, 27, 44, 45)
    k(f"""
    s_cmp_lt_u32 s2, 224
    s_cbranch_scc0 L_KEY_NEXT
    s_cmp_eq_u32 s45, 0
    s_cbranch_scc1 L_KEY_NEXT
    s_cmp_eq_u32 s44, s49
    s_cbranch_scc0 L_UP
    s_cmp_eq_u32 s45, s50
    s_cbranch_scc1 L_KEY_NEXT
    L_UP:
    s_mov_b32 s49, s44
    s_mov_b32 s50, s45
    s_sub_u32 s40, s44, 1
    s_sub_u32 s41, s45, 1
    s_andn2_b32 s40, 0x7ff, s40
    s_andn2_b32 s41, 0x7ff, s41
    s_lshl_b32 s40, s40, 10
    s_lshl_b32 s41, s41, 10
    v_and_b32 v4, 1, v1
    v_mov_b32 v3, s40
    v_mov_b32 v12, s41
    v_cmp_eq_u32 vcc, 1, v4
    s_movk_i32 s53, 1000
    s_nop 0
    v_cndmask_b32 v3, v3, v12, vcc
    v_lshl_add_u32 v3, v7, 4, v3
    L_HN_POLL:
    """)
    k("s_mov_b32 exec_lo, 0x30003\ns_mov_b32 exec_hi, 0x30003")
    for s in range(16): k(f"buffer_load_dwordx4 {vr(Af+4*s,4)}, v3, s[28:31], s48 offen offset:{s*64} sc1")
    k("s_mov_b64 exec, -1")
    k("v_mov_b32 v8, 0\nv_mov_b32 v9, 0\nv_mov_b32 v10, 0\nv_mov_b32 v11, 0\nv_mov_b32 v12, 0\ns_waitcnt lgkmcnt(0)")
    for s in range(16):
        k(f"s_waitcnt vmcnt({15-s})\nv_mfma_f32_16x16x32_bf16 v[8:11], {vr(Af+4*s,4)}, {vr(Bf+4*s,4)}, v[8:11]")
        k(f"v_max3_u32 v12, v12, v{Af+4*s}, v{Af+4*s+1}\nv_max3_u32 v12, v12, v{Af+4*s+2}, v{Af+4*s+3}")
    k(f"""
    v_cmp_eq_u32 vcc, -1, v12
    s_sub_u32 s53, s53, 1
    s_cbranch_scc1 L_HN_OUT
    s_cbranch_vccnz L_HN_POLL
    L_HN_OUT:
    s_nop 2
    v_permlane16_swap_b32 v8, v9
    v_mul_f32 v12, {f32(-LOG2E)}, v8
    v_exp_f32 v12, v12
    v_mov_b32_dpp v14, v8 row_ror:8
    v_add_f32 v12, 1.0, v12
    v_rcp_f32 v12, v12
    v_mul_f32 v8, v8, v14
    v_mul_f32 v8, v8, v12
    s_nop 1
    v_mov_b32_dpp v9, v8 quad_perm:[1,0,3,2]
    v_cvt_pk_bf16_f32 v8, v8, v9
    v_min_u32 v8, -2, v8
    L_KEY_NEXT:
    s_cmp_lg_u32 s51, 0
    s_cbranch_scc1 L_KEY_POLL
    s_cmp_lt_u32 s2, 224
    s_cbranch_scc0 L_DN0
    s_mov_b64 exec, 0x550055
    buffer_store_dword v8, v6, s[28:31], s52 offen sc1
    s_mov_b64 exec, -1
    L_NOACT:
    """)
    ST(15)
    k(f"""
    v_mov_b32 v36, {MISC+64}
    ds_write_b64 v36, v[24:25]
    s_waitcnt lgkmcnt(0)
    L_TOPW:
    s_barrier
    s_cmp_eq_u32 s36, 0
    s_cbranch_scc1 L_W0B
    v_mov_b32 v36, {MISC+64}
    ds_read_b64 v[24:25], v36
    s_waitcnt lgkmcnt(0)
    v_readfirstlane_b32 s44, v24
    v_readfirstlane_b32 s45, v25
    L_HAVETOP:
    s_sub_u32 s44, s44, 1
    s_sub_u32 s45, s45, 1
    s_andn2_b32 s46, 0x7ff, s44
    s_andn2_b32 s47, 0x7ff, s45
    s_cmp_lt_u32 s57, 2
    s_cbranch_scc0 L_STD
    s_cmp_eq_u32 s54, s46
    s_cbranch_scc1 L_STD
    s_cmp_eq_u32 s54, s47
    s_cbranch_scc1 L_STD
    buffer_store_dwordx4 v[40:43], v2, s[24:27], s55 offen{outmod}
    L_STD:
    L_END:
    s_endpgm
    """)
    PX = MISC + 128
    k(f"""
    L_W0B:
    s_cmp_lt_u32 s2, 224
    s_cbranch_scc1 L_HAVETOP
    """)
    for w in range(0, 6, 2): k(f"ds_read2_b32 {vr(26+w,2)}, v6 offset0:{w*32} offset1:{w*32+32}")
    k(f"""
    ds_read_b32 v32, v6 offset:768
    s_waitcnt lgkmcnt(1)
    v_pk_add_f32 v[26:27], v[26:27], v[28:29]
    v_pk_add_f32 v[26:27], v[26:27], v[30:31]
    v_add_f32 v26, v26, v27
    s_waitcnt lgkmcnt(0)
    v_add_f32 v26, v26, v32
    v_fmac_f32 v14, v26, v16
    v_cvt_pk_bf16_f32 v14, v14, v14
    buffer_store_short v14, v13, s[24:27], s58 offen
    s_endpgm
    L_DN0:
    v_mov_b32 v36, {MISC+64}
    ds_write_b64 v36, v[24:25]
    v_and_b32 v6, 1, v7
    v_cmp_eq_u32 vcc, 1, v6
    s_add_u32 s41, s58, {HN}
    s_mov_b32 s43, {STAT}
    v_cndmask_b32 v12, v24, v25, vcc
    v_add_u32 v12, -1, v12
    v_not_b32 v13, v12
    v_and_b32 v13, 0x7ff, v13
    v_and_b32 v14, 14, v1
    v_lshlrev_b32 v14, 1, v14
    v_lshl_add_u32 v15, v13, 10, v14
    v_lshlrev_b32 v20, 3, v13
    s_movk_i32 s53, 1000
    L_BS_POLL:
    buffer_load_dword v14, v15, s[28:31], s41 offen sc1
    buffer_load_dwordx2 v[18:19], v20, s[28:31], s43 offen sc1
    s_sub_u32 s53, s53, 1
    s_cbranch_scc1 L_BS_OUT
    s_waitcnt vmcnt(0)
    v_max3_u32 v17, v14, v18, v19
    v_cmp_eq_u32 vcc, -1, v17
    s_cbranch_vccnz L_BS_POLL
    L_BS_OUT:
    v_and_b32 v21, 15, v1
    v_lshlrev_b32 v21, 1, v21
    v_lshl_add_u32 v13, v13, 10, v21
    v_not_b32 v16, v12
    v_ashrrev_i32 v16, 31, v16
    v_or_b32 v16, 0x80000000, v16
    v_xor_b32 v16, v16, v12
    v_mul_f32 v16, {f32(-LOG2E)}, v16
    v_exp_f32 v16, v16
    v_and_b32 v6, 1, v1
    v_add_f32 v16, 1.0, v16
    v_rcp_f32 v16, v16
    v_cmp_eq_u32 vcc, 1, v6
    s_waitcnt vmcnt(0)
    v_lshlrev_b32 v17, 16, v14
    v_and_b32 v14, 0xffff0000, v14
    v_cndmask_b32 v14, v17, v14, vcc
    v_and_b32 v6, 31, v1
    v_lshlrev_b32 v6, 2, v6
    v_add_u32 v6, {PX}, v6
    v_fma_f32 v14, v14, v19, v18
    s_cmp_lt_u32 s57, 2
    s_cbranch_scc0 L_TOPW
    s_sub_u32 s44, s44, 1
    s_sub_u32 s45, s45, 1
    s_andn2_b32 s46, 0x7ff, s44
    s_andn2_b32 s47, 0x7ff, s45
    s_cmp_eq_u32 s54, s46
    s_cbranch_scc1 L_TOPW
    s_cmp_eq_u32 s54, s47
    s_cbranch_scc1 L_TOPW
    buffer_store_dwordx4 v[40:43], v2, s[24:27], s55 offen{outmod}
    s_branch L_TOPW
    L_DOWN:
    """)
    k.srd(32, 66, 1792*1024)
    k(f"""
    v_lshrrev_b32 v5, 1, v1
    v_lshlrev_b32 v5, 10, v5
    v_and_b32 v6, 1, v1
    v_lshl_add_u32 v5, v6, 4, v5
    s_sub_u32 s42, s36, 1
    s_lshl_b32 s46, s42, 18
    s_add_u32 s46, s46, s58
    s_mul_i32 s59, s42, 6144
    s_add_u32 s59, s59, {WD}
    """)
    for s in range(2, 8):
        k(f"s_add_u32 m0, s59, {(s-2)*1024}\ns_add_u32 s47, s46, {s*32*1024}\nbuffer_load_dwordx4 v5, s[32:35], s47 offen lds")
    k(f"""
    v_bfe_u32 v4, v1, 2, 2
    v_lshl_add_u32 v4, v7, 3, v4
    v_lshlrev_b32 v4, 5, v4
    v_and_b32 v3, 3, v1
    v_lshl_add_u32 v4, v3, 3, v4
    s_lshl_b32 s47, s42, 11
    s_add_u32 s47, s47, {FW}
    v_add_u32 v3, s47, v4
    v_add_u32 v4, s59, v4
    v_lshrrev_b32 v5, 1, v1
    v_lshlrev_b32 v5, 7, v5
    v_lshl_add_u32 v5, v6, 4, v5
    s_lshl_b32 s48, s36, 10
    v_add_u32 v12, s48, v2
    v_lshl_add_u32 v13, v7, 1, v6
    v_lshl_add_u32 v13, v13, 4, s48
    s_lshl_b32 s48, s42, 12
    s_add_u32 s48, s48, {ACT}
    s_mov_b32 s39, {SPIN}
    """)
    for s in range(2):
        k(f"ds_read_b64_tr_b16 {vr(Bf+4*s,2)}, v3 offset:{s*1024}\nds_read_b64_tr_b16 {vr(Bf+4*s+2,2)}, v3 offset:{s*1024+128}")
    k(f"""
    s_lshl_b32 s42, s42, 7
    s_add_u32 s42, s42, {PX}
    v_and_b32 v3, 15, v1
    v_lshl_add_u32 v3, v3, 2, s42
    v_mov_b32 v8, 0
    v_mov_b32 v9, 0
    v_mov_b32 v10, 0
    v_mov_b32 v11, 0
    """)
    k("s_waitcnt vmcnt(0) lgkmcnt(0)")
    for s in range(2, 8):
        k(f"ds_read_b64_tr_b16 {vr(Bf+4*s,2)}, v4 offset:{(s-2)*1024}\nds_read_b64_tr_b16 {vr(Bf+4*s+2,2)}, v4 offset:{(s-2)*1024+128}")
    ST(14)
    k(f"""
    v_mov_b32 v36, {MISC+64}
    s_mov_b32 s53, {LSPIN}
    L_DW:
    ds_read_b64 v[24:25], v36
    s_sub_u32 s53, s53, 1
    s_cbranch_scc1 L_DG
    s_waitcnt lgkmcnt(0)
    v_cmp_eq_u32 vcc, 0, v24
    s_cbranch_vccnz L_DW
    L_DG:
    s_cmp_lt_u32 s57, 2
    s_cbranch_scc0 L_DG2
    v_readfirstlane_b32 s44, v24
    v_readfirstlane_b32 s45, v25
    s_sub_u32 s44, s44, 1
    s_sub_u32 s45, s45, 1
    s_andn2_b32 s46, 0x7ff, s44
    s_andn2_b32 s47, 0x7ff, s45
    s_cmp_eq_u32 s54, s46
    s_cbranch_scc1 L_DG2
    s_cmp_eq_u32 s54, s47
    s_cbranch_scc1 L_DG2
    buffer_store_dwordx4 v[40:43], v2, s[24:27], s55 offen{outmod}
    L_DG2:
    s_sleep {dsl}
    """)
    ST(16)
    k(f"""
    buffer_load_dwordx4 v[16:19], v5, s[28:31], s48 offen sc1
    s_sleep {ps}
    L_ACT_POLL:
    buffer_load_dwordx4 v[20:23], v5, s[28:31], s48 offen sc1
    s_waitcnt vmcnt(1)
    v_max3_u32 v14, v16, v17, v18
    v_max_u32 v14, v14, v19
    v_cmp_eq_u32 vcc, -1, v14
    s_cbranch_vccz L_ACT0
    buffer_load_dwordx4 v[16:19], v5, s[28:31], s48 offen sc1
    s_waitcnt vmcnt(1)
    v_max3_u32 v14, v20, v21, v22
    v_max_u32 v14, v14, v23
    v_cmp_eq_u32 vcc, -1, v14
    s_sub_u32 s39, s39, 1
    s_cbranch_scc1 L_ACT1
    s_cbranch_vccnz L_ACT_POLL
    L_ACT1:
    ds_write_b128 v12, v[20:23]
    s_branch L_ACT2
    L_ACT0:
    ds_write_b128 v12, v[16:19]
    L_ACT2:
    """)
    for s in range(8): k(f"ds_read_b128 {vr(Af+4*s,4)}, v13 offset:{s*128}")
    for s in range(8): k(f"s_waitcnt lgkmcnt({7-s})\nv_mfma_f32_16x16x32_bf16 v[8:11], {vr(Af+4*s,4)}, {vr(Bf+4*s,4)}, v[8:11]")
    k("s_nop 7")
    ST(17)
    k("ds_write2_b32 v3, v8, v9 offset1:16\ns_waitcnt lgkmcnt(0)\ns_barrier\ns_endpgm")
    k(".p2align 6\nL_BODY:")
    W = {3: ('2', '2', '2'), 2: ('2', '1', None), 1: ('0', None, None)}[waits]
    def wt(i): return f"s_waitcnt lgkmcnt({W[i]})\n" if W[i] else ""
    for u in range(4):
        cur, oth = (SA, SB) if u % 2 == 0 else (SB, SA)
        for e in range(16):
            k(f"v_exp_f32 v{cur+e}, v{cur+e}")
            if e == 1: k(f"{wt(0)}v_smfmac_f32_32x32x32_bf16 {vr(O,16)}, {vr(VH,4)}, {vr(oth+8,8)}, v{IDX}\nds_read_b128 {vr(VH,4)}, v{AH} offset:{u*TP}")
            if e == 5: k(f"{wt(1)}v_mfma_f32_32x32x16_bf16 {vr(oth,16)}, {vr(KF,4)}, {vr(Q,4)}, {vr(C,16)}\nds_read_b128 {vr(KF,4)}, v{AK} offset:{(u+2)*TP}")
            if e == 10: k(f"{wt(2)}v_smfmac_f32_32x32x32_bf16 {vr(O,16)}, {vr(VL,4)}, {vr(cur,8)}, v{IDX}\nds_read_b128 {vr(VL,4)}, v{AV} offset:{(u+1)*TP}")
    k(f"""
    v_add_u32 v{AK}, {4*TP}, v{AK}
    v_add_u32 v{AV}, {4*TP}, v{AV}
    v_add_u32 v{AH}, {4*TP}, v{AH}
    s_setpc_b64 s[58:59]
    """)
    k(f"""
    L_LAG:
    s_mov_b32 s39, {SPIN}
    L_CK_POLL:
    s_waitcnt vmcnt(0)
    v_cmp_gt_u32 vcc, 8, v31
    s_sub_u32 s39, s39, 1
    s_cbranch_scc1 L_CK_OUT
    s_cbranch_vccz L_CK_OUT
    s_sleep 2
    global_load_dword v31, v30, s[72:73] sc1
    s_branch L_CK_POLL
    L_CK_OUT:
    s_add_u32 s46, s36, 12
    s_mul_i32 s47, s46, {TP}
    s_lshl_b32 s46, s46, 11
    s_mov_b32 s48, 12
    L_B2:
    s_mov_b32 m0, s47
    s_addk_i32 s47, {4*TP}
    buffer_load_dwordx4 v2, s[28:31], s46 offen sc1 lds
    buffer_load_dwordx4 v2, s[28:31], s46 offen offset:1024 sc1 lds
    s_addk_i32 s46, 8192
    s_sub_u32 s48, s48, 1
    s_cmp_lg_u32 s48, 0
    s_cbranch_scc1 L_B2
    s_branch L_QFIN
    L_LAG2:
    s_waitcnt vmcnt(0)
    """)
    SF(15)
    k("s_barrier\ns_setprio 1")
    ST(5)
    k(f"""
    v_mov_b32 v28, -1
    v_mov_b32 v29, -1
    v_mov_b32 v30, -1
    v_mov_b32 v31, -1
    s_sub_u32 s47, s56, 256
    buffer_store_dwordx4 v[28:31], v3, s[28:31], s56 offen sc1
    buffer_store_dwordx4 v[28:31], v3, s[28:31], s47 offen sc1
    s_add_u32 s46, s55, {HN}
    s_sub_u32 s47, s46, 4096
    buffer_store_dwordx4 v[28:31], v2, s[28:31], s46 offen sc1
    buffer_store_dwordx4 v[28:31], v2, s[28:31], s47 offen sc1
    s_and_b32 s45, s2, 7
    s_mul_i32 s45, s45, 28
    s_lshr_b32 s48, s2, 3
    s_add_u32 s45, s45, s48           ; cb
    s_cmp_eq_u32 s36, 4
    s_cbranch_scc0 L_NOS4
    s_lshl_b32 s47, s2, 5
    s_add_u32 s47, s47, {KEY2}
    s_lshl_b32 s46, s45, 7
    s_add_u32 s46, s46, {ACT}
    s_lshl_b32 s39, s53, 6
    s_add_u32 s39, s39, {STAT}
    s_mov_b64 exec, 15
    buffer_store_dwordx4 v[28:31], v2, s[28:31], s39 offen sc1
    s_mov_b64 exec, 1
    buffer_store_dwordx2 v[28:29], v2, s[28:31], s47 offen sc1
    s_cmp_ge_u32 s48, 28
    s_cbranch_scc1 L_NOS4B
    s_mov_b64 exec, 3
    buffer_store_dwordx4 v[28:31], v2, s[28:31], s46 offen sc1
    L_NOS4B:
    s_mov_b64 exec, -1
    L_NOS4:
    s_lshl_b32 s45, s45, 4
    s_and_b32 s47, s36, 3
    s_lshl_b32 s43, s47, 11
    s_mul_i32 s47, s47, {128*3584}
    s_add_u32 s45, s45, s47
    v_mul_u32_u24 v24, 3584, v1
    s_mov_b32 s34, {512*3584}
    s_mov_b32 s35, 0x00020000
    s_mov_b32 s40, {64*3584}
    s_mov_b32 s41, 0
    s_mov_b64 s[14:15], s[62:63]
    s_mov_b64 s[12:13], s[64:65]
    s_cmp_lt_u32 s2, 224
    s_cbranch_scc1 L_UPWG
    s_mov_b64 s[14:15], s[66:67]
    s_mov_b64 s[12:13], s[66:67]
    s_mov_b32 s40, 32768
    s_mov_b32 s41, 0x100000
    s_lshl_b32 s45, s43, 7
    s_lshl_b32 s47, s37, 5
    s_add_u32 s45, s45, s47
    v_lshrrev_b32 v24, 1, v1
    v_lshlrev_b32 v24, 10, v24
    v_and_b32 v25, 1, v1
    v_lshl_add_u32 v24, v25, 4, v24
    L_UPWG:
    """)
    def ffn(i):
        if now in (True, 'ffn'): return
        m, hf = i >> 1, i & 1
        k(f"s_mov_b32 s32, s{14-2*m}\ns_mov_b32 s33, s{15-2*m}\ns_add_u32 m0, s43, {FW + m*8192 + hf*1024}\ns_add_u32 s48, s45, {'s41' if m else 0}\ns_add_u32 s48, s48, {'s40' if hf else 0}\nbuffer_load_dwordx4 v24, s[32:35], s48 offen lds")
    for it in range(16):
        k(call)
        d = it + 1
        if d == 1:
            k("s_waitcnt vmcnt(0)"); signal(4, 28, 29)
        if d in (1, 2): resload(2*d - 2); resload(2*d - 1)
        if 3 <= d <= 8: resload(d + 1)
        if d == 6: ktop()
        if d == fat: ffn(0); ffn(1)
        if d == fat + 1: ffn(2); ffn(3)
        if d == wu:
            k(f"""
            s_lshr_b32 s46, s2, 3
            s_and_b32 s47, s2, 7
            s_cmp_eq_u32 s36, 7
            s_cbranch_scc0 L_WU1
            s_mov_b32 s20, s66
            s_mov_b32 s21, s67
            s_mov_b32 s22, {1792*1024}
            v_lshlrev_b32 v28, 10, v1
            s_mul_i32 s46, s46, {56*1024}
            s_lshl_b32 s47, s47, 7
            s_branch L_WU2
            L_WU1:
            s_cmp_eq_u32 s36, 6
            s_cbranch_scc1 L_WU4
            s_cmp_eq_u32 s36, 4
            s_cselect_b32 s20, s62, s64
            s_cselect_b32 s21, s63, s65
            s_mov_b32 s22, {512*3584}
            v_lshrrev_b32 v28, 2, v1
            v_mul_u32_u24 v28, 3584, v28
            v_and_b32 v29, 3, v1
            v_lshl_add_u32 v28, v29, 7, v28
            s_mul_i32 s46, s46, {16*3584}
            s_mul_i32 s47, s47, 448
            L_WU2:
            s_add_u32 s46, s46, s47
            buffer_load_dword v25, v28, s[20:23], s46 offen
            s_branch L_WU3
            L_WU4:
            global_load_dword v25, v2, s[60:61]
            L_WU3:
            """)
        if d == free[1] - 1:
            k(f"s_cmp_eq_u32 s36, 6\ns_cbranch_scc0 L_NC2\nv_lshlrev_b32 v30, 7, v1\nv_add_u32 v30, {CNTB+4}, v30\nglobal_load_dword v31, v30, s[72:73] sc1\nL_NC2:")
        if d == free[1]:
            k(f"""
            s_cmp_eq_u32 s36, 6
            s_cbranch_scc0 L_C2_OUT
            s_mov_b32 s39, {SPIN}
            s_waitcnt vmcnt(0)
            L_C2_POLL:
            v_cmp_gt_u32 vcc, 16, v31
            s_sub_u32 s39, s39, 1
            s_cbranch_scc1 L_C2_OUT
            s_cbranch_vccz L_C2_OUT
            s_sleep 8
            global_load_dword v31, v30, s[72:73] sc1
            s_waitcnt vmcnt(0)
            s_branch L_C2_POLL
            L_C2_OUT:
            """)
            SF(17); k("s_barrier"); k6(0)
        if d == free[1] + 1: k6(1)
    k("s_branch L_DONE")
    k(f"""
    L_RETRY:
    s_mov_b32 s44, 1
    v_mov_b32 v28, 0xff800000
    s_mov_b32 s47, 0
    L_RMAX:
    buffer_load_dwordx4 {vr(KF,4)}, v2, s[28:31], s47 offen sc1
    s_add_u32 s47, s47, 2048
    s_waitcnt vmcnt(0)
    v_mfma_f32_32x32x16_bf16 {vr(SA,16)}, {vr(KF,4)}, {vr(Q,4)}, 0
    s_nop 11
    """)
    for i in range(8): k(f"v_max3_f32 v28, v28, v{SA+2*i}, v{SA+2*i+1}")
    k("s_cmp_lt_u32 s47, 0x20000\ns_cbranch_scc1 L_RMAX")
    allreduce_halves(k, 28, 29, 'v_max_f32')
    k(f"v_sub_f32 v{C}, 0, v28")
    for i in range(1, 16): k(f"v_mov_b32 v{C+i}, v{C}")
    for i in range(16): k(f"v_mov_b32 v{O+i}, 0")
    k(f"""
    v_cmp_eq_u32 vcc, 16, v27
    v_mov_b32 v28, 0x3f803f80
    v_mov_b32 v29, 0
    v_cndmask_b32 v28, v29, v28, vcc
    """)
    for i in range(4): k(f"v_mov_b32 v{VL+i}, v28\nv_mov_b32 v{VH+i}, v28")
    k(f"""
    s_mov_b32 s47, 0
    L_RLOOP:
    buffer_load_dwordx4 {vr(KF,4)}, v2, s[28:31], s47 offen sc1
    s_mov_b32 exec_lo, 0xffff
    s_mov_b32 exec_hi, 0xffff
    buffer_load_dwordx4 {vr(VL,4)}, v26, s[28:31], s47 offen sc1
    buffer_load_dwordx4 {vr(VH,4)}, v26, s[28:31], s47 offen offset:512 sc1
    s_mov_b64 exec, -1
    s_add_u32 s47, s47, 2048
    s_waitcnt vmcnt(0)
    v_mfma_f32_32x32x16_bf16 {vr(SA,16)}, {vr(KF,4)}, {vr(Q,4)}, {vr(C,16)}
    s_nop 11
    """)
    for e in range(16): k(f"v_exp_f32 v{SA+e}, v{SA+e}")
    k(f"""
    s_nop 1
    v_smfmac_f32_32x32x32_bf16 {vr(O,16)}, {vr(VL,4)}, {vr(SA,8)}, v{IDX}
    v_smfmac_f32_32x32x32_bf16 {vr(O,16)}, {vr(VH,4)}, {vr(SA+8,8)}, v{IDX}
    s_cmp_lt_u32 s47, 0x20000
    s_cbranch_scc1 L_RLOOP
    s_branch L_FINISH
    L_CODE_END:
    """)
    return k

def build(k, path):
    s = f"; @launch grid=({k.grid},1,1) block=({k.block},1,1) lds={k.lds}\n"
    s += '.amdgcn_target "amdgcn-amd-amdhsa--gfx950"\n.text\n' + k.text() + '.section .rodata,"a"\n.p2align 6\n' + k.desc()
    open(path, 'w').write(s)
    import hz
    print(path, 'hazards:', hz.check(s))
if __name__ == '__main__':
    build(fused(), 'v13.s')
    import stamp
    build(stamp.instrument(fused(stamps=True), 0), 'v13t.s')
    build(stamp.instrument(fused(stamps='front'), 0), 'v13f.s')
```

```python
import sys, struct, math
from gen1 import Kern, vr, f32, allreduce_halves, top2, NAME
KVF = 0; STAT1 = 0x20000; WOT = 0x24000; OB = WOT + 0x80000; HN = OB + 0x200000; STAT = HN + 0x200000
KEY2 = STAT + 0x4000; ACT = KEY2 + 0x4000; CNTB = ACT + 0x8000; PSX = CNTB + 0x2000; WS_SIZE = PSX + 0x10000
CSCALE = 0.25 * math.log2(math.e)
OFF = 96.0
TP = 2064
SPIN = 20000
LSPIN = 2000000
LOG2E = math.log2(math.e)

def fused(prio=11, stamps=False, codepf=True, free=(14, 10), depth=3, early=0, waits=1, now=False, outmod=' sc1', pa=10, pb=13, spec=False, wu=8, osl=8, orl=4, prl=4, finmod='', psl=6, c2at=10, ks=7, ksl=4, nres=10, ab=1, dsl=20, ps=8, hth=0, fat=13):
    k = Kern(NAME + '_kernel', 256, 512, 163840, 256, sgpr=74)
    def ST(n):
        if stamps and not (stamps == 'front' and 7 <= n <= 17): k.L.append(f'    ; STAMP {n}')
    def SF(n):
        if stamps == 'front': k.L.append(f'    ; STAMP {n}')
    XS, WSL, WKV, EX = 0, 65536, 131072, 147456
    X2 = EX + 8192; FLG = X2 + 256; CSX = FLG + 256
    FW = 141440; MISC = 159872; AX = 0; PS = 16384; C2F = MISC + 80
    Q, KF, VL, VH, IDX, AK, AV, AH, C, SA, SB, O, STG = 4, 8, 12, 16, 20, 21, 22, 23, 32, 48, 64, 80, 96
    ACC = 144
    def chk(base, n, t):
        k(f"v_max3_u32 v{t}, v{base}, v{base+1}, v{base+2}")
        for i in range(3, n - 1, 2): k(f"v_max3_u32 v{t}, v{t}, v{base+i}, v{base+i+1}")
        k(f"v_max_u32 v{t}, v{t}, v{base+n-1}\nv_cmp_eq_u32 vcc, -1, v{t}")
    def setup():
        k(f"""
    s_and_b32 s49, s36, 1
    s_bfe_u32 s50, s36, 0x10001
    s_lshr_b32 s51, s36, 2
    s_mov_b32 s28, s72
    s_mov_b32 s29, s73
    s_mov_b32 s30, {WS_SIZE}
    s_mov_b32 s31, 0x00020000
    s_and_b32 s48, s36, 3
    s_lshl_b32 s47, s48, 11
    v_add_u32 v24, s47, v2
    s_movk_i32 s43, 16384
    v_and_b32 v27, 31, v1             ; d
    v_lshlrev_b32 v25, 3, v27
    s_lshl_b32 s45, s37, 9
    s_lshl_b32 s46, s49, 8
    s_add_u32 s45, s45, s46
    s_add_u32 s45, s45, {STAT1}
    v_lshrrev_b32 v26, 5, v1          ; h
    s_lshl_b32 s52, s50, 1
    s_add_u32 s52, s52, s51
    s_lshl_b32 s46, s48, 6
    s_add_u32 s46, s46, {CSX}
    v_lshl_add_u32 v9, v26, 5, s46
    s_and_b32 s46, s36, 3
    s_lshl_b32 s46, s46, 12
    s_add_u32 s46, s46, {WKV + 2048}
    v_lshl_add_u32 v11, v1, 5, s46
    s_mov_b32 s16, s4
    s_mov_b32 s17, s5
    s_lshl_b32 s53, s37, 3
    s_add_u32 s53, s53, s38           ; octet
    s_lshl_b32 s54, s53, 3
    s_add_u32 s54, s54, s36
    s_lshl_b32 s55, s54, 10
    s_lshl_b32 s56, s49, 15
    s_add_u32 s56, s56, s41
    s_lshl_b32 s39, s38, 11
    s_add_u32 s56, s56, s39
    s_lshl_b32 s39, s52, 9
    s_add_u32 s56, s56, s39
    s_add_u32 s56, s56, {OB}
    s_and_b32 s42, s38, 1
    s_lshl_b32 s42, s42, 3
    s_add_u32 s57, s42, s36
    s_lshl_b32 s42, s57, 15
    s_add_u32 s42, s42, {WOT}
    v_bfe_u32 v14, v1, 4, 1
    v_lshlrev_b32 v3, 14, v14
    v_lshl_add_u32 v3, v26, 8, v3
    v_and_b32 v14, 15, v1
    v_lshl_add_u32 v3, v14, 4, v3
    s_mul_i32 s47, s48, {TP}
    v_add_u32 v30, s47, v2
    v_and_b32 v14, 15, v1
    v_mul_u32_u24 v28, {4*TP}, v14
    s_add_u32 s48, s47, 2048
    v_add_u32 v28, s48, v28
    v_mov_b32 v16, 0x3f803f80
    v_mov_b32 v17, 0x3f803f80
    v_mov_b32 v18, 0x3f803f80
    v_mov_b32 v19, 0x3f803f80
    v_lshlrev_b32 v26, 8, v26
    v_lshl_add_u32 v26, v27, 4, v26
    v_add_u32 v26, 1024, v26
    v_add_u32 v{AH}, 512, v26
    v_mov_b32 v29, 2048
    v_mov_b32 v31, 0x100000
    v_cmp_eq_u32 vcc, 16, v27
    v_mov_b32 v{IDX}, 0xdddddddd
    v_mov_b32 v{AK}, v2
    v_cndmask_b32 v29, v31, v29, vcc
    v_cmp_gt_u32 vcc, 16, v27
    s_nop 1
    v_cndmask_b32 v{AV}, v29, v26, vcc
    v_cndmask_b32 v{AH}, v29, v{AH}, vcc
    """)
    def batchC():
        k(f"""
        buffer_load_dwordx2 v[104:105], v25, s[28:31], s45 offen sc1
        buffer_load_dwordx4 v[96:99], v24, s[28:31], 0 offen sc1
        buffer_load_dwordx4 v[100:103], v24, s[28:31], s43 offen sc1
        """)
    def batchH():
        k(f"""
        s_movk_i32 s46, 8192
        s_movk_i32 s47, 24576
        buffer_load_dwordx4 v[96:99], v24, s[28:31], 0 offen sc1
        buffer_load_dwordx4 v[108:111], v24, s[28:31], 0 offen offset:1024 sc1
        buffer_load_dwordx4 v[100:103], v24, s[28:31], s46 offen sc1
        buffer_load_dwordx4 v[112:115], v24, s[28:31], s46 offen offset:1024 sc1
        buffer_load_dwordx4 v[116:119], v24, s[28:31], s43 offen sc1
        buffer_load_dwordx4 v[120:123], v24, s[28:31], s43 offen offset:1024 sc1
        buffer_load_dwordx4 v[124:127], v24, s[28:31], s47 offen sc1
        buffer_load_dwordx4 v[128:131], v24, s[28:31], s47 offen offset:1024 sc1
        buffer_load_dwordx2 v[104:105], v25, s[28:31], s45 offen sc1
        """)
    def signal(off, va, vb):
        k(f"""
        s_lshr_b32 s46, s2, 2
        s_lshl_b32 s46, s46, 7
        s_add_u32 s46, s46, {CNTB + off}
        v_mov_b32 v{va}, s46
        v_mov_b32 v{vb}, 1
        s_mov_b64 exec, 1
        global_atomic_add v{va}, v{vb}, s[72:73] sc1
        s_mov_b64 exec, -1
        """)
    k(f"""
    s_cmp_ge_u32 s2, 256
    s_cbranch_scc1 L_END
    s_load_dwordx8 s[4:11], s[0:1], 0
    s_load_dwordx2 s[72:73], s[0:1], 96
    s_load_dwordx4 s[68:71], s[0:1], 80
    s_load_dwordx2 s[12:13], s[0:1], 32
    s_load_dwordx8 s[60:67], s[0:1], 48
    v_lshrrev_b32 v1, 6, v0
    s_and_b32 s37, s2, 7
    v_readfirstlane_b32 s36, v1
    """)
    if codepf:
        k(f"""
        s_getpc_b64 s[58:59]
        L_PC:
        s_lshr_b32 s39, s2, 5
        s_xor_b32 s39, s39, 1
        s_lshr_b32 s38, s36, 1
        s_or_b32 s39, s39, s38
        s_cbranch_scc1 L_NOPF
        v_lshlrev_b32 v4, 7, v0
        v_min_u32 v4, L_CODE_END-L_PC-4, v4
        global_load_dword v5, v4, s[58:59]
        L_NOPF:
        """)
    k(f"""
    s_lshl_b32 s37, s37, 2
    s_bfe_u32 s39, s2, 0x20003
    s_add_u32 s37, s37, s39           ; g
    s_lshr_b32 s38, s2, 5             ; j
    v_and_b32 v1, 63, v0              ; lane
    v_lshlrev_b32 v2, 4, v1           ; lane*16
    s_lshl_b32 s41, s37, 16           ; g*65536
    v_mov_b32 v10, {FLG}
    s_mov_b32 s18, 2097152
    s_mov_b32 s19, 0x00020000
    s_mov_b32 s23, 0x00020000
    s_cmp_ge_u32 s36, 4
    s_cbranch_scc1 L_HELP
    v_and_b32 v12, 15, v1
    s_lshr_b32 s45, s38, 1
    s_lshl_b32 s45, s45, 14
    s_lshl_b32 s46, s36, 8
    s_add_u32 s45, s45, s46
    s_add_u32 s45, s45, s41
    v_and_b32 v14, 48, v1
    v_lshl_add_u32 v12, v12, 10, v14
    s_lshl_b32 s46, s36, 12
    s_add_u32 s47, s46, {WKV}
    s_mov_b32 m0, s47
    s_movk_i32 s22, 16384
    s_bitcmp1_b32 s38, 0
    s_waitcnt lgkmcnt(0)
    s_cselect_b32 s20, s10, s8
    s_cselect_b32 s21, s11, s9
    s_mov_b32 s16, s4
    s_mov_b32 s17, s5
    """)
    for st in range(4):
        k(f"buffer_load_dwordx4 {vr(64+4*st,4)}, v12, s[16:19], s45 offen offset:{st*64}")
        k(f"buffer_load_dwordx4 v2, s[20:23], s46 offen offset:{st*1024} lds")
    k(f"""
    s_barrier
    s_branch L_COMP
    L_HELP:
    v_mov_b32 v16, 0
    v_mov_b32 v17, 0
    v_mov_b32 v18, 0
    v_mov_b32 v19, 0
    ds_write_b128 v10, v[16:19]
    ds_write_b32 v10, v16 offset:{C2F - FLG}
    s_cmp_ge_u32 s36, 6
    s_cbranch_scc1 L_H67
    v_lshrrev_b32 v12, 3, v1
    v_and_b32 v13, 7, v1
    v_lshrrev_b32 v14, 1, v12
    s_lshl_b32 s45, s37, 1
    s_add_u32 s45, s45, s38
    s_mov_b32 s57, 0
    s_cmp_eq_u32 s36, 4
    s_cbranch_scc1 L_IS0
    v_and_b32 v14, 1, v14
    v_lshlrev_b32 v14, 2, v14
    v_add_u32 v10, 4, v10
    L_IS0:
    v_xor_b32 v15, v14, v13
    v_lshlrev_b32 v15, 4, v15
    v_lshl_add_u32 v28, v12, 10, v15
    s_cselect_b32 s39, 64, 0
    v_xor_b32 v29, s39, v28
    v_add_u32 v29, 8192, v29
    v_mov_b32 v12, 1
    s_cselect_b32 s22, s18, 524288
    s_cselect_b32 s43, 7, 16
    s_cselect_b32 s44, {XS}, {WSL}
    s_waitcnt lgkmcnt(0)
    s_cselect_b32 s20, s4, s6
    s_cselect_b32 s21, s5, s7
    s_cselect_b32 s42, s41, 0
    s_cselect_b32 s39, 0, s38
    s_lshl_b32 s39, s39, 7
    s_add_u32 s42, s42, s39
    """)
    if not early: k("s_barrier")
    SF(12)
    k(f"""
    L_ISL:
    s_cmp_lt_u32 s57, {depth}
    s_cbranch_scc1 L_IS2
    s_waitcnt vmcnt({8*(depth-1)})
    ds_write_b32 v10, v12
    v_add_u32 v12, 1, v12
    L_IS2:
    s_add_u32 s46, s45, s57
    s_and_b32 s46, s46, 7
    s_lshl_b32 s46, s46, s43
    s_add_u32 s46, s46, s42
    s_mov_b32 m0, s44
    """)
    for gi in range(0, 8, 2):
        k("s_nop 0\nbuffer_load_dwordx4 v28, s[20:23], s46 offen lds\ns_addk_i32 m0, 1024\ns_nop 0\nbuffer_load_dwordx4 v29, s[20:23], s46 offen lds\ns_addk_i32 m0, 1024\ns_addk_i32 s46, 16384")
    k(f"""
    s_addk_i32 s44, 8192
    s_add_u32 s57, s57, 1
    """)
    if early: k(f"s_cmp_eq_u32 s57, {early}\ns_cbranch_scc0 L_IS3\ns_barrier\nL_IS3:")
    k(f"""
    s_cmp_lt_u32 s57, 8
    s_cbranch_scc1 L_ISL
    s_branch L_XTRA
    L_H67:
    s_mov_b32 s30, {WS_SIZE}
    s_mov_b32 s31, 0x00020000
    s_lshr_b32 s39, s2, 5
    s_xor_b32 s46, s36, 7
    s_or_b32 s39, s39, s46
    s_waitcnt lgkmcnt(0)
    s_mov_b32 s28, s72
    s_mov_b32 s29, s73
    s_cbranch_scc1 L_H6
    v_mov_b32 v24, -1
    v_mov_b32 v25, -1
    v_mov_b32 v26, -1
    v_mov_b32 v27, -1
    s_mul_i32 s39, s2, 4608
    buffer_store_dwordx4 v[24:27], v2, s[28:31], s39 offen sc1
    buffer_store_dwordx4 v[24:27], v2, s[28:31], s39 offen offset:1024 sc1
    buffer_store_dwordx4 v[24:27], v2, s[28:31], s39 offen offset:2048 sc1
    buffer_store_dwordx4 v[24:27], v2, s[28:31], s39 offen offset:3072 sc1
    buffer_store_dwordx4 v[24:27], v2, s[28:31], s39 offen offset:3584 sc1
    s_lshl_b32 s39, s2, 8
    s_add_u32 s39, s39, {CNTB}
    s_mov_b64 exec, 0xffff
    buffer_store_dwordx4 v[16:19], v2, s[28:31], s39 offen sc1
    s_mov_b64 exec, -1
    L_H6:
    s_barrier
    s_cmp_eq_u32 s36, 6
    s_cbranch_scc1 L_FIN
    s_branch L_W7
    L_SETUP:
    """)
    setup()
    k(f"""
    s_setpc_b64 s[58:59]
    L_COMP:
    s_and_b32 s49, s36, 1             ; th
    s_bfe_u32 s50, s36, 0x10001       ; hp
    s_mov_b32 s40, 0x3f803f80
    v_lshrrev_b32 v13, 4, v1
    v_bfe_u32 v14, v1, 2, 2
    v_lshl_add_u32 v12, v13, 3, v14
    v_and_b32 v15, 3, v1
    v_lshlrev_b32 v15, 3, v15
    v_lshl_add_u32 v12, v12, 5, v15
    v_add_u32 v114, s47, v12
    v_and_b32 v12, 31, v1
    s_lshl_b32 s39, s49, 5
    v_add_u32 v12, s39, v12           ; t
    v_bfe_u32 v13, v12, 1, 3
    v_lshrrev_b32 v15, 5, v1          ; h
    v_xor_b32 v13, v13, v15
    v_lshlrev_b32 v13, 4, v13
    v_lshlrev_b32 v12, 7, v12
    v_add_u32 v4, v12, v13
    v_xor_b32 v6, 64, v4
    v_xor_b32 v7, 0x60, v4
    v_lshl_add_u32 v13, v15, 3, v14
    v_lshrrev_b32 v14, 1, v14
    v_lshlrev_b32 v14, 2, v14
    v_bfe_u32 v15, v1, 4, 1
    v_lshlrev_b32 v15, 1, v15
    v_bfe_u32 v8, v1, 1, 1
    v_add_u32 v15, v15, v8
    s_lshl_b32 s48, s50, 2
    v_add_u32 v15, s48, v15
    v_xor_b32 v15, v15, v14
    v_lshlrev_b32 v15, 4, v15
    v_lshl_add_u32 v8, v13, 7, v15
    v_and_b32 v15, 1, v1
    v_lshl_add_u32 v8, v15, 3, v8
    v_add_u32 v8, {WSL}, v8
    s_lshl_b32 s46, s36, 11
    s_add_u32 s46, s46, {EX}
    v_lshl_add_u32 v12, v1, 5, s46
    v_mov_b32 v115, 1
    """)
    k("s_call_b64 s[58:59], L_SETUP")
    for i in range(32): k(f"v_mov_b32 v{ACC+i}, 0")
    for i in range(4): k(f"v_mov_b32 v{176+i}, s40")
    for i in range(8): k(f"v_mov_b32 v{96+i}, 0")
    k("s_waitcnt vmcnt(0)\nv_xor_b32 v5, 32, v4")
    ST(1)
    for st in range(4):
        k(f"ds_read_b64_tr_b16 {vr(80+4*st,2)}, v114 offset:{st*1024}\nds_read_b64_tr_b16 {vr(82+4*st,2)}, v114 offset:{st*1024+128}")
    for i in range(16): k(f"v_dot2c_f32_bf16 v100, s40, v{64+i}\nv_dot2c_f32_bf16 v101, v{64+i}, v{64+i}")
    k("s_waitcnt lgkmcnt(0)\ns_bitcmp1_b32 s38, 0\ns_cbranch_scc1 L_VM")
    for st in range(4): k(f"v_mfma_f32_16x16x32_bf16 v[96:99], {vr(80+4*st,4)}, {vr(64+4*st,4)}, v[96:99]")
    k("s_branch L_KM\nL_VM:")
    for st in range(4): k(f"v_mfma_f32_16x16x32_bf16 v[96:99], {vr(64+4*st,4)}, {vr(80+4*st,4)}, v[96:99]")
    k("L_KM:")
    for i in range(16): k(f"v_dot2c_f32_bf16 v{102+(i&1)}, s40, v{80+i}")
    k(f"""
    ds_write_b128 v12, v[96:99]
    s_nop 1
    v_add_f32 v102, v102, v103
    ds_write_b128 v12, v[100:103] offset:16
    s_mov_b64 exec, 1
    ds_add_u32 v10, v115 offset:12
    s_mov_b64 exec, -1
    """)
    def qwait(tag):
        k(f"""
        s_cmp_lt_u32 s57, s58
        s_cbranch_scc1 L_QGO{tag}
        L_QWAIT{tag}:
        ds_read_b64 v[12:13], v10
        s_sub_u32 s39, s39, 1
        s_cbranch_scc1 L_QGO{tag}
        s_waitcnt lgkmcnt(0)
        v_min_u32 v12, v12, v13
        s_nop 0
        v_readfirstlane_b32 s58, v12
        s_cmp_lt_u32 s57, s58
        s_cbranch_scc0 L_QWAIT{tag}
        L_QGO{tag}:
        s_add_u32 s57, s57, 1
        """)
    def qrd(X, W, off, sp):
        k(f"ds_read_b128 {vr(X+4*sp,4)}, v{4+sp} offset:{off}")
        k(f"ds_read_b64_tr_b16 {vr(W+4*sp,2)}, v8 offset:{off+sp*2048}")
        k(f"ds_read_b64_tr_b16 {vr(W+2+4*sp,2)}, v8 offset:{off+sp*2048+512}")
    def qmf(X, W, sp): k(f"v_mfma_f32_32x32x16_bf16 {vr(ACC,16)}, {vr(W+4*sp,4)}, {vr(X+4*sp,4)}, {vr(ACC,16)}")
    def qcs(W, par, tag):
        for sp in range(4): k(f"v_mfma_f32_32x32x16_bf16 v[160:175], {vr(W+4*sp,4)}, v[176:179], v[160:175]")
    k(f"s_mov_b32 s57, 0\ns_mov_b32 s58, 0\ns_mov_b32 s39, {LSPIN}")
    SF(7); qwait('P'); SF(8)
    for sp in range(4): qrd(32, 48, 0, sp)
    k("L_QLOOP:")
    qwait('A')
    for sp in range(4): k("s_waitcnt lgkmcnt(9)"); qmf(32, 48, sp); qrd(64, 80, 8192, sp)
    for i in range(5): k(f"v_add_u32 v{4+i}, 16384, v{4+i}")
    qcs(48, 0, 'A')
    k("s_cmp_eq_u32 s57, 8\ns_cbranch_scc1 L_QLAST")
    qwait('B')
    for sp in range(4): k("s_waitcnt lgkmcnt(9)"); qmf(64, 80, sp); qrd(32, 48, 0, sp)
    qcs(80, 1, 'B')
    k("s_branch L_QLOOP\nL_QLAST:")
    SF(9)
    k("s_setprio 2\ns_waitcnt lgkmcnt(0)")
    for sp in range(4): qmf(64, 80, sp)
    if ab == 0: k("s_barrier")
    qcs(80, 1, 'C')
    if ab == 1: k("s_barrier")
    k(f"""
    s_lshl_b32 s46, s36, 6
    s_add_u32 s46, s46, {CSX}
    v_add_u32 v13, s46, v1            ; lanes 0 / 32 -> +0 / +32
    s_lshl_b32 s46, s36, 8
    s_add_u32 s46, s46, {CSX + 256}
    v_add_u32 v24, s46, v25
    s_nop 1
    ds_write_b128 v11, {vr(ACC+8,4)}
    ds_write_b128 v11, {vr(ACC+12,4)} offset:16
    s_mov_b32 exec_lo, 1
    s_mov_b32 exec_hi, 1
    s_nop 0
    ds_write_b128 v13, v[168:171]
    ds_write_b128 v13, v[172:175] offset:16
    s_mov_b64 exec, -1
    """)
    ST(20)
    k("s_branch L_JOIN2")
    k(f"""
    L_FIN:
    s_call_b64 s[58:59], L_SETUP
    s_setprio 3
    v_mov_b32 v104, 128
    v_lshlrev_b32 v12, 5, v1
    v_add_u32 v12, {EX}, v12
    s_mov_b32 s39, {LSPIN}
    L_KC_POLL:
    ds_read_b32 v13, v10 offset:12
    s_sub_u32 s39, s39, 1
    s_cbranch_scc1 L_KC_OUT
    s_waitcnt lgkmcnt(0)
    v_cmp_gt_u32 vcc, 4, v13
    s_cbranch_vccnz L_KC_POLL
    L_KC_OUT:
    global_load_dword v105, v104, s[70:71] sc1
    """)
    k("ds_read_b128 v[96:99], v12 offset:6144\nds_read_b128 v[100:103], v12 offset:6160")
    for a in range(3):
        k(f"ds_read_b128 {vr(64+8*a,4)}, v12 offset:{a*2048}\nds_read_b128 {vr(68+8*a,4)}, v12 offset:{a*2048+16}")
    for a in range(3):
        k(f"s_waitcnt lgkmcnt({4-2*a})")
        for i in range(7): k(f"v_add_f32 v{96+i}, v{96+i}, v{64+8*a+i}")
    for op in ('v_permlane16_swap_b32', 'v_permlane32_swap_b32'):
        k("v_mov_b32 v64, v100\nv_mov_b32 v65, v101\nv_mov_b32 v66, v102\ns_nop 0")
        k(f"{op} v100, v64\n{op} v101, v65\n{op} v102, v66")
        k("v_add_f32 v100, v100, v64\nv_add_f32 v101, v101, v65\nv_add_f32 v102, v102, v66")
    k(f"""
    v_mul_f32 v100, {f32(1/512)}, v100
    v_mul_f32 v101, {f32(1/512)}, v101
    v_fma_f32 v101, -v100, v100, v101
    v_add_f32 v101, {f32(1e-5)}, v101
    v_rsq_f32 v101, v101
    v_and_b32 v12, 15, v1
    v_lshlrev_b32 v13, 2, v12
    v_add_u32 v13, {X2}, v13
    ds_write_b32 v13, v100
    ds_write_b32 v13, v101 offset:64
    ds_write_b32 v13, v102 offset:128
    v_lshrrev_b32 v14, 4, v1
    v_lshlrev_b32 v13, 4, v14
    v_add_u32 v13, {X2}, v13
    ds_read_b128 v[64:67], v13
    ds_read_b128 v[68:71], v13 offset:64
    ds_read_b128 v[72:75], v13 offset:128
    s_lshl_b32 s46, s37, 1
    s_lshr_b32 s47, s38, 2
    s_add_u32 s46, s46, s47
    s_lshl_b32 s46, s46, 11
    s_bfe_u32 s47, s38, 0x10001
    v_and_b32 v13, 1, v14
    v_lshrrev_b32 v14, 1, v14
    s_bitcmp1_b32 s38, 0
    s_cbranch_scc1 L_FV
    s_lshl_b32 s47, s47, 8
    v_lshlrev_b32 v13, 9, v13
    v_lshl_add_u32 v13, v12, 4, v13
    v_lshl_add_u32 v13, v14, 3, v13
    s_waitcnt lgkmcnt(0)
    """)
    for r in range(4): k(f"v_fma_f32 v{96+r}, -v100, v{72+r}, v{96+r}")
    for r in range(4): k(f"v_mul_f32 v{96+r}, v{96+r}, v101")
    k(f"""
    s_branch L_FS
    L_FV:
    s_lshl_b32 s47, s47, 9
    s_add_u32 s47, s47, 1024
    v_lshlrev_b32 v13, 3, v13
    v_lshl_add_u32 v13, v12, 4, v13
    v_lshl_add_u32 v13, v14, 8, v13
    s_waitcnt lgkmcnt(0)
    """)
    for r in range(4): k(f"v_fma_f32 v{96+r}, -v{64+r}, v102, v{96+r}")
    for r in range(4): k(f"v_mul_f32 v{96+r}, v{96+r}, v{68+r}")
    k(f"""
    L_FS:
    s_add_u32 s46, s46, s47
    v_cvt_pk_bf16_f32 v96, v96, v97
    v_cvt_pk_bf16_f32 v97, v98, v99
    s_mov_b32 s39, {SPIN}
    v_min_u32 v132, -2, v96
    v_min_u32 v133, -2, v97
    v_mov_b32 v136, v13
    buffer_store_dwordx2 v[132:133], v136, s[28:31], s46 offen sc1
    v_min_u32 v134, -2, v100
    v_min_u32 v135, -2, v101
    s_lshl_b32 s44, s37, 9
    s_lshr_b32 s48, s38, 1
    s_lshl_b32 s48, s48, 7
    s_add_u32 s44, s44, s48
    s_add_u32 s44, s44, {STAT1}
    v_lshlrev_b32 v137, 3, v12
    s_mov_b32 s40, s46
    s_bitcmp1_b32 s38, 0
    s_cbranch_scc0 L_KVS1
    v_mov_b32 v137, 0x7ffffff0
    L_KVS1:
    buffer_store_dwordx2 v[134:135], v137, s[28:31], s44 offen sc1
    """)
    ST(2)
    k(f"""
    s_waitcnt vmcnt(2)
    L_F0_POLL:
    v_cmp_ne_u32 vcc, 1, v105
    s_sub_u32 s39, s39, 1
    s_cbranch_scc1 L_KVS3
    s_cbranch_vccz L_KVS3
    global_load_dword v105, v104, s[70:71] sc1
    s_waitcnt vmcnt(0)
    s_branch L_F0_POLL
    L_KVS3:
    v_mov_b32 v13, 8
    ds_write_b32 v10, v13 offset:8    ; F0 seen
    s_waitcnt vmcnt(0)
    buffer_load_dwordx2 v[138:139], v136, s[28:31], s40 offen sc1
    buffer_load_dwordx2 v[140:141], v137, s[28:31], s44 offen sc1
    """)
    batchH()
    k(f"""
    s_waitcnt vmcnt(9)
    v_max3_u32 v138, v138, v139, v140
    v_max_u32 v138, v138, v141
    v_cmp_eq_u32 vcc, -1, v138
    s_cbranch_vccz L_SIG
    buffer_store_dwordx2 v[132:133], v136, s[28:31], s40 offen sc1
    buffer_store_dwordx2 v[134:135], v137, s[28:31], s44 offen sc1
    s_waitcnt vmcnt(0)
    s_branch L_SIG
    L_W67:
    """)
    batchH()
    k("s_waitcnt vmcnt(9)\nL_SIG:")
    signal(0, 12, 13)
    SF(14)
    k("s_setprio 0\ns_branch L_KH_CHK")
    k("L_W7:")
    k.srd(32, 12, 524288)
    k(f"""
    s_and_b32 s46, s2, 15
    s_lshl_b32 s46, s46, 6
    s_lshr_b32 s47, s2, 4
    s_lshl_b32 s47, s47, 15
    s_add_u32 s46, s46, s47
    v_and_b32 v28, 3, v1
    v_lshlrev_b32 v28, 1, v28
    v_bfe_u32 v29, v1, 2, 2
    v_lshl_add_u32 v28, v29, 4, v28
    v_bfe_u32 v29, v1, 4, 1
    v_lshl_add_u32 v28, v29, 12, v28
    v_lshrrev_b32 v29, 5, v1
    v_lshl_add_u32 v28, v29, 14, v28
    """)
    for e in range(16):
        i, j = e >> 3, e & 7
        if j & 3 == 0: k(f"s_add_u32 s47, s46, {i*8 + (8192 if j >= 4 else 0)}")
        k(f"buffer_load_ushort v{112+e}, v28, s[32:35], s47 offen offset:{(j&3)*1024}")
    k(f"""
    s_cmp_lt_u32 s2, 32
    s_cbranch_scc0 L_W7B
    s_setprio 3
    v_mov_b32 v12, 1
    v_mov_b32 v13, 128
    s_mov_b64 exec, 1
    s_waitcnt vmcnt(16)
    """)
    ST(19)
    k(f"""
    global_atomic_add v14, v16, v12, s[70:71] sc0 sc1
    s_waitcnt vmcnt(0)
    v_readfirstlane_b32 s39, v14
    s_cmp_eq_u32 s39, 31
    s_cbranch_scc0 L_H7C
    global_store_dword v13, v12, s[70:71] sc1
    L_H7C:
    s_mov_b64 exec, -1
    s_setprio 0
    L_W7B:
    """)
    k("s_call_b64 s[58:59], L_SETUP")
    k("s_waitcnt vmcnt(0)")
    for i in range(8): k(f"v_lshl_or_b32 v{80+i}, v{113+2*i}, 16, v{112+2*i}")
    k(f"""
    s_and_b32 s46, s2, 15
    s_lshl_b32 s46, s46, 15
    s_lshr_b32 s47, s2, 4
    s_lshl_b32 s47, s47, 11
    s_add_u32 s46, s46, s47
    s_add_u32 s46, s46, {WOT}
    buffer_store_dwordx4 v[80:83], v2, s[28:31], s46 offen sc1
    buffer_store_dwordx4 v[84:87], v2, s[28:31], s46 offen offset:1024 sc1
    s_mov_b32 s39, {LSPIN}
    L_W7W:
    ds_read_b32 v12, v10 offset:8
    s_sub_u32 s39, s39, 1
    s_cbranch_scc1 L_W7G
    s_waitcnt lgkmcnt(0)
    v_cmp_eq_u32 vcc, 0, v12
    s_cbranch_vccnz L_W7W
    L_W7G:
    s_branch L_W67
    L_XTRA:
    """)
    SF(10)
    k("s_call_b64 s[58:59], L_SETUP")
    k(f"""
    v_mov_b32 v14, {FLG}
    ds_read_b32 v13, v14 offset:8
    s_waitcnt lgkmcnt(0)
    v_cmp_eq_u32 vcc, 0, v13
    s_cbranch_vccnz L_XLATE
    s_waitcnt vmcnt({8*(depth-1)})
    ds_write_b32 v10, v12
    v_add_u32 v12, 1, v12
    """)
    batchH()
    for d in range(depth - 2, -1, -1):
        k(f"s_waitcnt vmcnt({8*d+9})\nds_write_b32 v10, v12\nv_add_u32 v12, 1, v12")
    SF(11)
    k("s_branch L_KH_CHK\nL_XLATE:")
    for d in range(depth - 1, -1, -1):
        k(f"s_waitcnt vmcnt({8*d})\nds_write_b32 v10, v12\nv_add_u32 v12, 1, v12")
    SF(11)
    k(f"v_mov_b32 v10, {FLG}")
    k("L_JOIN:")
    k(f"""
    s_mov_b32 s39, {LSPIN}
    L_HWAIT:
    ds_read_b96 v[12:14], v10
    s_sub_u32 s39, s39, 1
    s_cbranch_scc1 L_HGO
    s_waitcnt lgkmcnt(0)
    v_min3_u32 v12, v12, v13, v14
    v_cmp_gt_u32 vcc, {hth or 7}, v12
    s_cbranch_vccnz L_HWAIT
    L_HGO:
    """)
    SF(13)
    batchH()
    k(f"L_KH_CHK:\nv_mov_b32 v106, 0\nv_mov_b32 v107, 0\ns_mov_b32 s39, {SPIN}\nL_KH_POLL:\ns_waitcnt vmcnt(0)")
    chk(96, 36, 29)
    k("s_sub_u32 s39, s39, 1\ns_cbranch_scc1 L_KH_OUT\ns_cbranch_vccz L_KH_OUT")
    batchH()
    k(f"""
    s_branch L_KH_POLL
    L_KH_OUT:
    v_lshlrev_b32 v12, 7, v1
    v_add_u32 v15, {CNTB}, v12
    s_lshl_b32 s46, s36, 8
    s_add_u32 s46, s46, {CSX + 256 - 1024}
    v_add_u32 v24, s46, v25
    """)
    ST(4)
    k(f"""
    s_barrier
    global_load_dword v31, v15, s[72:73] sc1
    ds_write_b64 v24, v[104:105]
    ds_write_b128 v30, v[96:99]
    ds_write_b128 v30, v[108:111] offset:1024
    ds_write_b128 v28, v[16:19]
    ds_write_b128 v30, v[100:103] offset:{4*TP}
    ds_write_b128 v30, v[112:115] offset:{4*TP+1024}
    ds_write_b128 v30, v[116:119] offset:{8*TP}
    ds_write_b128 v30, v[120:123] offset:{8*TP+1024}
    ds_write_b128 v30, v[124:127] offset:{12*TP}
    ds_write_b128 v30, v[128:131] offset:{12*TP+1024}
    v_mov_b32 v30, v15
    s_waitcnt lgkmcnt(0)
    s_barrier
    ds_read_b128 {vr(ACC,4)}, v11
    ds_read_b128 {vr(ACC+4,4)}, v11 offset:16
    ds_read_b128 v[160:163], v9
    ds_read_b128 v[164:167], v9 offset:16
    s_branch L_LAG
    L_JOIN2:
    s_waitcnt lgkmcnt(0)
    s_barrier
    """)
    ST(18)
    k(f"""
    ds_read_b64 v[104:105], v24
    ds_read_b128 v[96:99], v{AK} offset:{2*TP}
    ds_read_b128 v[100:103], v{AK} offset:{TP}
    L_QFIN:
    ds_read_b128 {vr(KF,4)}, v{AK}
    ds_read_b128 {vr(VH,4)}, v{AV}
    s_waitcnt lgkmcnt(2)
    v_mul_f32 v105, {f32(CSCALE)}, v105
    """)
    for i in range(8): k(f"v_fma_f32 v{ACC+i}, -v104, v{160+i}, v{ACC+i}")
    for i in range(0, 8, 2): k(f"v_pk_mul_f32 {vr(ACC+i,2)}, {vr(ACC+i,2)}, v[104:105] op_sel:[0,1] op_sel_hi:[1,1]")
    k("s_nop 0")
    for i in range(4): k(f"v_cvt_pk_bf16_f32 v{Q+i}, v{ACC+2*i}, v{ACC+2*i+1}")
    k(f"""
    v_mov_b32 v{O}, 0
    v_mov_b32 v{O+1}, 0
    v_mfma_f32_32x32x16_bf16 {vr(SA,16)}, v[96:99], {vr(Q,4)}, 0
    v_mfma_f32_32x32x16_bf16 {vr(SB,16)}, v[100:103], {vr(Q,4)}, 0
    """)
    for i in range(2, 16): k(f"v_mov_b32 v{O+i}, 0")
    k(f"v_max_f32 v28, v{SA}, v{SA+1}")
    for i in range(1, 16): k(f"v_max3_f32 v28, v28, v{SA+2*i}, v{SA+2*i+1}")
    allreduce_halves(k, 28, 29, 'v_max_f32')
    k(f"v_sub_f32 v{C}, {f32(-OFF)}, v28")
    for i in range(1, 16): k(f"v_mov_b32 v{C+i}, v{C}")
    k(f"""
    s_cmp_eq_u32 s51, 0
    s_waitcnt lgkmcnt(1)
    v_mfma_f32_32x32x16_bf16 {vr(SA,16)}, {vr(KF,4)}, {vr(Q,4)}, {vr(C,16)}
    ds_read_b128 {vr(KF,4)}, v{AK} offset:{TP}
    ds_read_b128 {vr(VL,4)}, v{AV}
    """)
    for i in range(8): k(f"v_mov_b32 v{SB+8+i}, 0")
    k("s_cbranch_scc0 L_LAG2\ns_nop 0")
    ST(5)
    RES = 128
    def resload(n):
        k(f"s_add_u32 s48, s42, {n*4096}")
        for o in range(4): k(f"buffer_load_dwordx4 {vr(RES+16*n+4*o,4)}, v2, s[28:31], s48 offen offset:{o*1024} sc1")
    def xwload():
        k.srd(20, 60, 1024)
        k(f"""
        s_and_b32 s46, s38, 1
        s_lshl_b32 s46, s46, 9
        s_lshl_b32 s47, s36, 6
        s_add_u32 s46, s46, s47
        s_lshr_b32 s55, s53, 1
        s_lshl_b32 s54, s55, 4
        s_lshl_b32 s55, s55, 14
        s_add_u32 s55, s55, s46
        v_and_b32 v105, 48, v1
        v_and_b32 v104, 15, v1
        v_lshl_add_u32 v104, v104, 10, v105
        buffer_load_dwordx4 v[96:99], v104, s[16:19], s55 offen
        buffer_load_dwordx4 v[100:103], v105, s[20:23], s46 offen
        """)
    call = "s_call_b64 s[58:59], L_BODY"
    for it in range(16):
        k(call)
        d = it + 1
        if d == 3: SF(16); k("s_barrier")
        if d == prio: k("s_setprio 0")
        if 4 <= d < 12: resload(d - 4)
        if d == 12: xwload()
    k(f"""
    L_DONE:
    s_waitcnt lgkmcnt(0)
    v_smfmac_f32_32x32x32_bf16 {vr(O,16)}, {vr(VH,4)}, {vr(SB+8,8)}, v{IDX}
    s_mov_b32 s44, 0
    L_FINISH:
    s_nop 10
    v_mov_b32 v29, v{O+8}
    v_add_f32 v28, abs(v{O}), abs(v{O+1})
    v_add_f32 v28, v28, abs(v{O+2})
    v_permlane32_swap_b32 v{O+8}, v29
    v_rcp_f32 v29, v{O+8}
    v_fmac_f32 v28, {f32(256.0)}, v{O+8}
    """)
    for i in range(3, 8): k(f"v_add_f32 v28, v28, abs(v{O+i})")
    for i in range(8): k(f"v_mul_f32 v{O+i}, v{O+i}, v29")
    k(f"""
    v_mov_b32 v29, 0x7f800000
    v_cmp_nlt_f32 vcc, v28, v29
    s_cmp_lg_u32 s44, 0
    s_cbranch_scc1 L_OK
    s_cbranch_vccnz L_RETRY
    L_OK:
    v_mov_b32 v28, {C2F}
    s_mov_b32 s39, {LSPIN}
    L_C2W:
    ds_read_b32 v29, v28
    s_sub_u32 s39, s39, 1
    s_cbranch_scc1 L_C2G
    s_waitcnt lgkmcnt(0)
    v_cmp_eq_u32 vcc, 0, v29
    s_cbranch_vccnz L_C2W
    L_C2G:
    """)
    for i in range(4): k(f"v_cvt_pk_bf16_f32 v{O+i}, v{O+2*i}, v{O+2*i+1}")
    for i in range(4): k(f"v_min_u32 v{O+i}, -2, v{O+i}")
    k(f"buffer_store_dwordx4 {vr(O,4)}, v3, s[28:31], s56 offen sc1\ns_setprio 0")
    ST(6)
    D, A = 16, 32
    k.srd(24, 68, 2097152)
    k(f"""
    s_lshr_b32 s46, s53, 1
    s_lshl_b32 s46, s46, 14
    s_lshl_b32 s47, s36, 11
    s_add_u32 s46, s46, s47
    s_add_u32 s46, s46, {OB}
    v_add_u32 v5, s47, v2
    s_mov_b32 s39, {SPIN}
    s_barrier
    """)
    ST(7)
    k("s_waitcnt vmcnt(1)")
    for i in range(4):
        k(f"v_lshlrev_b32 v{D+2*i}, 16, v{96+i}\nv_and_b32 v{D+1+2*i}, 0xffff0000, v{96+i}")
        k(f"v_lshlrev_b32 v{8+2*i}, 16, v{100+i}\nv_and_b32 v{9+2*i}, 0xffff0000, v{100+i}")
    k(f"""
    v_pk_add_f32 v[106:107], v[8:9], v[10:11]
    v_pk_add_f32 v[108:109], v[12:13], v[14:15]
    v_lshlrev_b32 v6, 2, v1
    s_lshl_b32 s47, s36, 8
    s_add_u32 s47, s47, {PS}
    v_pk_add_f32 v[106:107], v[106:107], v[108:109]
    v_add_u32 v4, s47, v6
    v_add_u32 v7, {PS}, v6
    v_add_f32 v99, v106, v107
    s_lshl_b32 s40, s53, 8
    s_add_u32 s40, s40, {PSX}
    s_xor_b32 s41, s40, 256
    v_and_b32 v0, 15, v1
    v_add_u32 v0, s54, v0             ; token
    v_sub_u32 v3, 2047, v0
    {'s_waitcnt vmcnt(0)' if osl < 0 else 's_sleep %d' % osl}
    buffer_load_dwordx4 v[24:27], v2, s[28:31], s46 offen sc1
    buffer_load_dwordx4 v[28:31], v2, s[28:31], s46 offen offset:1024 sc1
    L_OP_POLL:
    s_waitcnt vmcnt(0)
    """)
    chk(24, 8, A)
    k(f"""
    s_sub_u32 s39, s39, 1
    s_cbranch_scc1 L_OP_OUT
    s_cbranch_vccz L_OP_OUT
    s_sleep {orl}
    buffer_load_dwordx4 v[24:27], v2, s[28:31], s46 offen sc1
    buffer_load_dwordx4 v[28:31], v2, s[28:31], s46 offen offset:1024 sc1
    s_branch L_OP_POLL
    L_OP_OUT:
    ds_write_b128 v5, v[24:27]
    ds_write_b128 v5, v[28:31] offset:1024
    """)
    ST(8)
    k("s_waitcnt lgkmcnt(0)\ns_barrier")
    ST(9)
    for sp in range(12): k(f"ds_read_b128 {vr(A+4*sp,4)}, v2 offset:{sp*1024}")
    for sp in range(16):
        k(f"s_waitcnt lgkmcnt({11 if sp < 4 else 15 - sp})")
        k(f"v_mfma_f32_16x16x32_bf16 {vr(D,4)}, {vr(RES+8*sp,4)}, {vr(A+4*sp,4)}, {vr(D,4)}")
        if sp < 4: k(f"ds_read_b128 {vr(A+48+4*sp,4)}, v2 offset:{(12+sp)*1024}")
        k(f"v_mfma_f32_16x16x32_bf16 {vr(D+4,4)}, {vr(RES+8*sp+4,4)}, {vr(A+4*sp,4)}, {vr(D+4,4)}")
    ST(10)
    k(f"""
    s_nop 6
    v_pk_add_f32 v[24:25], v[16:17], v[18:19]
    v_pk_mul_f32 v[26:27], v[16:17], v[16:17]
    v_pk_mul_f32 v[28:29], v[16:17], v[8:9]
    v_pk_fma_f32 v[26:27], v[18:19], v[18:19], v[26:27]
    v_pk_fma_f32 v[28:29], v[18:19], v[10:11], v[28:29]
    v_pk_add_f32 v[24:25], v[24:25], v[20:21]
    v_pk_fma_f32 v[26:27], v[20:21], v[20:21], v[26:27]
    v_pk_fma_f32 v[28:29], v[20:21], v[12:13], v[28:29]
    v_pk_add_f32 v[24:25], v[24:25], v[22:23]
    v_pk_fma_f32 v[26:27], v[22:23], v[22:23], v[26:27]
    v_pk_fma_f32 v[28:29], v[22:23], v[14:15], v[28:29]
    v_add_f32 v96, v24, v25
    v_add_f32 v97, v26, v27
    v_add_f32 v98, v28, v29
    s_nop 0
    v_permlane16_swap_b32 v96, v97
    v_permlane16_swap_b32 v98, v99
    v_add_f32 v96, v96, v97
    v_add_f32 v98, v98, v99
    s_nop 1
    v_permlane32_swap_b32 v96, v98
    v_add_f32 v96, v96, v98
    ds_write_b32 v4, v96
    v_mov_b32 v36, {MISC+64}
    v_mov_b32 v37, 0
    ds_write_b32 v36, v37
    s_waitcnt lgkmcnt(0)
    s_barrier
    """)
    for w in range(0, 8, 2): k(f"ds_read2st64_b32 {vr(24+w,2)}, v7 offset0:{w} offset1:{w+1}")
    k(f"""
    s_waitcnt lgkmcnt(2)
    v_pk_add_f32 v[24:25], v[24:25], v[26:27]
    s_waitcnt lgkmcnt(0)
    v_pk_add_f32 v[28:29], v[28:29], v[30:31]
    v_pk_add_f32 v[24:25], v[24:25], v[28:29]
    s_cmp_lg_u32 s36, 0
    v_add_f32 v32, v24, v25
    v_min_u32 v32, -2, v32
    s_cbranch_scc1 L_PS_OTH
    buffer_store_dword v32, v6, s[28:31], s40 offen sc1
    s_setprio 3
    L_PS_OTH:
    s_sleep {psl}
    L_PS_POLL:
    buffer_load_dword v33, v6, s[28:31], s41 offen sc1
    s_sub_u32 s39, s39, 1
    s_cbranch_scc1 L_PS_OUT
    s_waitcnt vmcnt(0)
    v_cmp_eq_u32 vcc, -1, v33
    s_cbranch_vccz L_PS_OUT
    s_sleep {prl}
    s_branch L_PS_POLL
    L_PS_OUT:
    s_waitcnt vmcnt(0)
    """)
    ST(11)
    k(f"""
    v_add_f32 v32, v32, v33
    v_mov_b32 v34, v32
    s_nop 1
    v_permlane32_swap_b32 v32, v34    ; v32 = [A,B,A,B], v34 = [C,D,C,D]
    v_mov_b32 v33, v32
    v_mov_b32 v35, v34
    s_nop 0
    v_permlane16_swap_b32 v32, v33
    v_permlane16_swap_b32 v34, v35
    v_mul_f32 v32, {f32(1/512)}, v32
    v_mul_f32 v33, {f32(1/512)}, v33
    v_fma_f32 v33, -v32, v32, v33
    v_add_f32 v37, {f32(1e-5)}, v33
    v_rsq_f32 v33, v37
    v_fma_f32 v34, -v32, v35, v34
    v_mul_f32 v34, v34, v33
    v_mul_f32 v35, v32, v33
    v_ashrrev_i32 v36, 31, v34
    v_or_b32 v36, 0x80000000, v36
    v_xor_b32 v34, v34, v36
    v_and_b32 v34, 0xfffff800, v34
    v_or_b32 v34, v3, v34
    v_min_u32 v34, -2, v34            ; key
    s_nop 1
    v_mov_b32_dpp v26, v34 quad_perm:[1,0,3,2]
    v_max_u32 v24, v34, v26
    v_min_u32 v25, v34, v26
    """)
    for st in ['quad_perm:[2,3,0,1]', 'row_half_mirror', 'row_mirror']:
        k(f"s_nop 1\nv_mov_b32_dpp v26, v24 {st}\nv_mov_b32_dpp v27, v25 {st}")
        k("v_max_u32 v25, v25, v27\nv_med3_u32 v25, v24, v25, v26\nv_max_u32 v24, v24, v26")
    k(f"""
    s_and_b32 s46, s38, 1
    s_or_b32 s46, s46, s36
    v_cmp_ge_u32 s[56:57], v34, v25
    s_cbranch_scc1 L_NOKEY
    s_lshl_b32 s46, s53, {ks-1}
    s_add_u32 s46, s46, {KEY2}
    s_mov_b64 exec, 1
    buffer_store_dwordx2 v[24:25], v2, s[28:31], s46 offen sc1
    s_mov_b64 exec, -1
    v_fma_f32 v39, v37, v33, 1.0
    v_min_u32 v38, -2, v32
    v_min_u32 v39, -2, v39
    v_lshlrev_b32 v36, 3, v0
    s_mov_b32 s46, {STAT}
    s_and_b64 exec, s[56:57], 0xffff
    buffer_store_dwordx2 v[38:39], v36, s[28:31], s46 offen sc1
    s_mov_b64 exec, -1
    L_NOKEY:
    """)
    for i in range(8): k(f"v_fma_f32 v{48+i}, v{16+i}, v33, -v35")
    for i in range(0, 8, 2): k(f"v_pk_add_f32 {vr(40+i,2)}, {vr(16+i,2)}, {vr(48+i,2)}")
    for i in range(4): k(f"v_cvt_pk_bf16_f32 v{48+i}, v{48+2*i}, v{49+2*i}")
    for i in range(4): k(f"v_min_u32 v{48+i}, -2, v{48+i}")
    k(f"""
    s_add_u32 s46, s55, {HN}
    v_mov_b32 v61, v104
    s_mov_b64 exec, s[56:57]
    buffer_store_dwordx4 v[48:51], v61, s[28:31], s46 offen sc1
    s_mov_b64 exec, -1
    """)
    for i in range(4): k(f"v_cvt_pk_bf16_f32 v{40+i}, v{40+2*i}, v{41+2*i}")
    k(f"""
    v_add_u32 v60, 1, v34
    s_not_b64 exec, s[56:57]
    buffer_store_dwordx4 v[40:43], v61, s[24:27], s55 offen{outmod}
    s_mov_b64 exec, -1
    """)
    def candstore(tag):
        k(f"""
        v_cmp_gt_u32 vcc, s45, v60
        s_and_b64 exec, vcc, s[56:57]
        s_cbranch_execz L_CS{tag}
        buffer_store_dwordx4 v[40:43], v61, s[24:27], s55 offen{outmod}
        L_CS{tag}:
        s_mov_b64 exec, -1
        """)
    WD = 65536
    Bf, Af = 64, 128
    k(f"""
    v_lshrrev_b32 v7, 4, v1
    s_lshl_b32 s58, s37, 5
    s_cmp_eq_u32 s36, 0
    s_cbranch_scc1 L_W0
    s_cmp_lt_u32 s2, 224
    s_cbranch_scc1 L_TOPW
    s_branch L_DOWN
    L_W0:
    v_bfe_u32 v4, v1, 2, 2
    v_lshl_add_u32 v4, v7, 3, v4
    v_lshlrev_b32 v4, 4, v4
    v_and_b32 v6, 1, v1
    v_lshl_add_u32 v4, v6, 3, v4
    v_bfe_u32 v6, v1, 1, 1
    v_lshl_add_u32 v4, v6, 13, v4
    v_add_u32 v4, {FW}, v4
    s_mov_b32 s46, {KEY2}
    s_mov_b32 s47, {KEY2 + (64 << ks)}
    s_mov_b32 s39, {SPIN}
    v_lshlrev_b32 v5, {ks}, v1
    """)
    for s in range(16):
        k(f"ds_read_b64_tr_b16 {vr(Bf+4*s,2)}, v4 offset:{s*512}\nds_read_b64_tr_b16 {vr(Bf+4*s+2,2)}, v4 offset:{s*512+64}")
        if s % 4 == 3 and s < 15: k("s_waitcnt lgkmcnt(4)")
    ST(12)
    def keyload():
        k(f"""
        buffer_load_dwordx2 v[16:17], v5, s[28:31], s46 offen sc1
        buffer_load_dwordx2 v[18:19], v5, s[28:31], s47 offen sc1
        """)
    keyload()
    k(f"""
    s_and_b32 s52, s2, 7
    s_mul_i32 s52, s52, 28
    s_lshr_b32 s53, s2, 3
    s_add_u32 s52, s52, s53
    s_lshl_b32 s52, s52, 7
    s_add_u32 s52, s52, {ACT}
    v_and_b32 v10, 7, v1
    v_lshlrev_b32 v6, 4, v7
    v_lshl_add_u32 v6, v10, 1, v6
    s_mov_b32 s49, 0
    s_mov_b32 s50, 0
    s_mov_b32 s48, {HN}
    """)
    for i in range(64): k(f"v_mov_b32 v{Af+i}, 0")
    k(f"""
    L_KEY_POLL:
    s_waitcnt vmcnt(0)
    """)
    for i in range(4): k(f"v_add_u32 v{52+i}, 1, v{16+i}")
    k(f"""
    v_min3_u32 v24, v52, v53, v54
    v_min_u32 v24, v24, v55
    v_cmp_eq_u32 vcc, 0, v24
    s_sub_u32 s39, s39, 1
    s_cselect_b32 s51, 0, 1
    s_cbranch_vccnz L_KEY_MISS
    s_mov_b32 s51, 0
    s_branch L_KEY_TOP
    L_KEY_MISS:
    {'s_sleep %d' % ksl if ksl else ''}
    """)
    keyload()
    if not spec: k("s_cmp_lg_u32 s51, 0\ns_cbranch_scc1 L_KEY_POLL")
    k("L_KEY_TOP:")
    ST(13)
    top2(k, 52, 4, 24, 25, 26, 27, 44, 45)
    k(f"""
    s_cmp_lt_u32 s2, 224
    s_cbranch_scc0 L_KEY_NEXT
    s_cmp_eq_u32 s45, 0
    s_cbranch_scc1 L_KEY_NEXT
    s_cmp_eq_u32 s44, s49
    s_cbranch_scc0 L_UP
    s_cmp_eq_u32 s45, s50
    s_cbranch_scc1 L_KEY_NEXT
    L_UP:
    s_mov_b32 s49, s44
    s_mov_b32 s50, s45
    s_sub_u32 s40, s44, 1
    s_sub_u32 s41, s45, 1
    s_andn2_b32 s40, 0x7ff, s40
    s_andn2_b32 s41, 0x7ff, s41
    s_lshl_b32 s40, s40, 10
    s_lshl_b32 s41, s41, 10
    v_and_b32 v4, 1, v1
    v_mov_b32 v3, s40
    v_mov_b32 v12, s41
    v_cmp_eq_u32 vcc, 1, v4
    s_movk_i32 s53, 1000
    s_nop 0
    v_cndmask_b32 v3, v3, v12, vcc
    v_lshl_add_u32 v3, v7, 4, v3
    L_HN_POLL:
    """)
    k("s_mov_b32 exec_lo, 0x30003\ns_mov_b32 exec_hi, 0x30003")
    for s in range(16): k(f"buffer_load_dwordx4 {vr(Af+4*s,4)}, v3, s[28:31], s48 offen offset:{s*64} sc1")
    k("s_mov_b64 exec, -1")
    k("v_mov_b32 v8, 0\nv_mov_b32 v9, 0\nv_mov_b32 v10, 0\nv_mov_b32 v11, 0\nv_mov_b32 v12, 0\ns_waitcnt lgkmcnt(0)")
    for s in range(16):
        k(f"s_waitcnt vmcnt({15-s})\nv_mfma_f32_16x16x32_bf16 v[8:11], {vr(Af+4*s,4)}, {vr(Bf+4*s,4)}, v[8:11]")
        k(f"v_max3_u32 v12, v12, v{Af+4*s}, v{Af+4*s+1}\nv_max3_u32 v12, v12, v{Af+4*s+2}, v{Af+4*s+3}")
    k(f"""
    v_cmp_eq_u32 vcc, -1, v12
    s_sub_u32 s53, s53, 1
    s_cbranch_scc1 L_HN_OUT
    s_cbranch_vccnz L_HN_POLL
    L_HN_OUT:
    s_nop 2
    v_permlane16_swap_b32 v8, v9
    v_mul_f32 v12, {f32(-LOG2E)}, v8
    v_exp_f32 v12, v12
    v_mov_b32_dpp v14, v8 row_ror:8
    v_add_f32 v12, 1.0, v12
    v_rcp_f32 v12, v12
    v_mul_f32 v8, v8, v14
    v_mul_f32 v8, v8, v12
    s_nop 1
    v_mov_b32_dpp v9, v8 quad_perm:[1,0,3,2]
    v_cvt_pk_bf16_f32 v8, v8, v9
    v_min_u32 v8, -2, v8
    L_KEY_NEXT:
    s_cmp_lg_u32 s51, 0
    s_cbranch_scc1 L_KEY_POLL
    s_cmp_lt_u32 s2, 224
    s_cbranch_scc0 L_DN0
    s_mov_b64 exec, 0x550055
    buffer_store_dword v8, v6, s[28:31], s52 offen sc1
    s_mov_b64 exec, -1
    L_NOACT:
    """)
    ST(15)
    k(f"""
    v_mov_b32 v36, {MISC+64}
    ds_write_b64 v36, v[24:25]
    s_waitcnt lgkmcnt(0)
    L_TOPW:
    s_barrier
    s_cmp_eq_u32 s36, 0
    s_cbranch_scc1 L_W0B
    v_mov_b32 v36, {MISC+64}
    ds_read_b64 v[24:25], v36
    s_waitcnt lgkmcnt(0)
    v_readfirstlane_b32 s44, v24
    v_readfirstlane_b32 s45, v25
    s_nop 1
    L_HAVETOP:
    """)
    candstore('A')
    k(f"""
    L_END:
    s_endpgm
    """)
    PX = MISC + 128
    k(f"""
    L_W0B:
    s_cmp_lt_u32 s2, 224
    s_cbranch_scc1 L_HAVETOP
    """)
    for w in range(0, 6, 2): k(f"ds_read2_b32 {vr(26+w,2)}, v6 offset0:{w*32} offset1:{w*32+32}")
    k(f"""
    ds_read_b32 v32, v6 offset:768
    s_waitcnt lgkmcnt(1)
    v_pk_add_f32 v[26:27], v[26:27], v[28:29]
    v_pk_add_f32 v[26:27], v[26:27], v[30:31]
    v_add_f32 v26, v26, v27
    s_waitcnt lgkmcnt(0)
    v_add_f32 v26, v26, v32
    v_fmac_f32 v14, v26, v16
    v_cvt_pk_bf16_f32 v14, v14, v14
    buffer_store_short v14, v13, s[24:27], s58 offen{finmod}
    s_endpgm
    L_DN0:
    v_mov_b32 v36, {MISC+64}
    ds_write_b64 v36, v[24:25]
    v_and_b32 v6, 1, v7
    v_cmp_eq_u32 vcc, 1, v6
    s_add_u32 s41, s58, {HN}
    s_mov_b32 s43, {STAT}
    v_cndmask_b32 v12, v24, v25, vcc
    v_add_u32 v12, -1, v12
    v_not_b32 v13, v12
    v_and_b32 v13, 0x7ff, v13
    v_and_b32 v14, 14, v1
    v_lshlrev_b32 v14, 1, v14
    v_lshl_add_u32 v15, v13, 10, v14
    v_lshlrev_b32 v20, 3, v13
    s_movk_i32 s53, 1000
    L_BS_POLL:
    buffer_load_dword v14, v15, s[28:31], s41 offen sc1
    buffer_load_dwordx2 v[18:19], v20, s[28:31], s43 offen sc1
    s_sub_u32 s53, s53, 1
    s_cbranch_scc1 L_BS_OUT
    s_waitcnt vmcnt(0)
    v_max3_u32 v17, v14, v18, v19
    v_cmp_eq_u32 vcc, -1, v17
    s_cbranch_vccnz L_BS_POLL
    L_BS_OUT:
    v_and_b32 v21, 15, v1
    v_lshlrev_b32 v21, 1, v21
    v_lshl_add_u32 v13, v13, 10, v21
    v_not_b32 v16, v12
    v_ashrrev_i32 v16, 31, v16
    v_or_b32 v16, 0x80000000, v16
    v_xor_b32 v16, v16, v12
    v_mul_f32 v16, {f32(-LOG2E)}, v16
    v_exp_f32 v16, v16
    v_and_b32 v6, 1, v1
    v_add_f32 v16, 1.0, v16
    v_rcp_f32 v16, v16
    v_cmp_eq_u32 vcc, 1, v6
    s_waitcnt vmcnt(0)
    v_lshlrev_b32 v17, 16, v14
    v_and_b32 v14, 0xffff0000, v14
    v_cndmask_b32 v14, v17, v14, vcc
    v_and_b32 v6, 31, v1
    v_lshlrev_b32 v6, 2, v6
    v_add_u32 v6, {PX}, v6
    v_fma_f32 v14, v14, v19, v18
    """)
    candstore('B')
    k(f"""
    s_branch L_TOPW
    L_DOWN:
    """)
    k.srd(32, 66, 1792*1024)
    k(f"""
    v_lshrrev_b32 v5, 1, v1
    v_lshlrev_b32 v5, 10, v5
    v_and_b32 v6, 1, v1
    v_lshl_add_u32 v5, v6, 4, v5
    s_sub_u32 s42, s36, 1
    s_lshl_b32 s46, s42, 18
    s_add_u32 s46, s46, s58
    s_mul_i32 s59, s42, 6144
    s_add_u32 s59, s59, {WD}
    """)
    for s in range(2, 8):
        k(f"s_add_u32 m0, s59, {(s-2)*1024}\ns_add_u32 s47, s46, {s*32*1024}\nbuffer_load_dwordx4 v5, s[32:35], s47 offen lds")
    k(f"""
    v_bfe_u32 v4, v1, 2, 2
    v_lshl_add_u32 v4, v7, 3, v4
    v_lshlrev_b32 v4, 5, v4
    v_and_b32 v3, 3, v1
    v_lshl_add_u32 v4, v3, 3, v4
    s_lshl_b32 s47, s42, 11
    s_add_u32 s47, s47, {FW}
    v_add_u32 v3, s47, v4
    v_add_u32 v4, s59, v4
    v_lshrrev_b32 v5, 1, v1
    v_lshlrev_b32 v5, 7, v5
    v_lshl_add_u32 v5, v6, 4, v5
    s_lshl_b32 s48, s36, 10
    v_add_u32 v12, s48, v2
    v_lshl_add_u32 v13, v7, 1, v6
    v_lshl_add_u32 v13, v13, 4, s48
    s_lshl_b32 s48, s42, 12
    s_add_u32 s48, s48, {ACT}
    s_mov_b32 s39, {SPIN}
    """)
    for s in range(2):
        k(f"ds_read_b64_tr_b16 {vr(Bf+4*s,2)}, v3 offset:{s*1024}\nds_read_b64_tr_b16 {vr(Bf+4*s+2,2)}, v3 offset:{s*1024+128}")
    k(f"""
    s_lshl_b32 s42, s42, 7
    s_add_u32 s42, s42, {PX}
    v_and_b32 v3, 15, v1
    v_lshl_add_u32 v3, v3, 2, s42
    v_mov_b32 v8, 0
    v_mov_b32 v9, 0
    v_mov_b32 v10, 0
    v_mov_b32 v11, 0
    """)
    k("s_waitcnt vmcnt(0) lgkmcnt(0)")
    for s in range(2, 8):
        k(f"ds_read_b64_tr_b16 {vr(Bf+4*s,2)}, v4 offset:{(s-2)*1024}\nds_read_b64_tr_b16 {vr(Bf+4*s+2,2)}, v4 offset:{(s-2)*1024+128}")
    ST(14)
    k(f"""
    v_mov_b32 v36, {MISC+64}
    s_mov_b32 s53, {LSPIN}
    L_DW:
    ds_read_b64 v[24:25], v36
    s_sub_u32 s53, s53, 1
    s_cbranch_scc1 L_DG
    s_waitcnt lgkmcnt(0)
    v_cmp_eq_u32 vcc, 0, v24
    s_cbranch_vccnz L_DW
    L_DG:
    v_readfirstlane_b32 s45, v25
    s_nop 1
    """)
    candstore('C')
    k(f"""
    s_sleep {dsl}
    """)
    ST(16)
    k(f"""
    buffer_load_dwordx4 v[16:19], v5, s[28:31], s48 offen sc1
    s_sleep {ps}
    L_ACT_POLL:
    buffer_load_dwordx4 v[20:23], v5, s[28:31], s48 offen sc1
    s_waitcnt vmcnt(1)
    v_max3_u32 v14, v16, v17, v18
    v_max_u32 v14, v14, v19
    v_cmp_eq_u32 vcc, -1, v14
    s_cbranch_vccz L_ACT0
    buffer_load_dwordx4 v[16:19], v5, s[28:31], s48 offen sc1
    s_waitcnt vmcnt(1)
    v_max3_u32 v14, v20, v21, v22
    v_max_u32 v14, v14, v23
    v_cmp_eq_u32 vcc, -1, v14
    s_sub_u32 s39, s39, 1
    s_cbranch_scc1 L_ACT1
    s_cbranch_vccnz L_ACT_POLL
    L_ACT1:
    ds_write_b128 v12, v[20:23]
    s_branch L_ACT2
    L_ACT0:
    ds_write_b128 v12, v[16:19]
    L_ACT2:
    """)
    for s in range(8): k(f"ds_read_b128 {vr(Af+4*s,4)}, v13 offset:{s*128}")
    for s in range(8): k(f"s_waitcnt lgkmcnt({7-s})\nv_mfma_f32_16x16x32_bf16 v[8:11], {vr(Af+4*s,4)}, {vr(Bf+4*s,4)}, v[8:11]")
    k("s_nop 7")
    ST(17)
    k("ds_write2_b32 v3, v8, v9 offset1:16\ns_waitcnt lgkmcnt(0)\ns_barrier\ns_endpgm")
    k(".p2align 6\nL_BODY:")
    W = {3: ('2', '2', '2'), 2: ('2', '1', None), 1: ('0', None, None)}[waits]
    def wt(i): return f"s_waitcnt lgkmcnt({W[i]})\n" if W[i] else ""
    for u in range(4):
        cur, oth = (SA, SB) if u % 2 == 0 else (SB, SA)
        for e in range(16):
            k(f"v_exp_f32 v{cur+e}, v{cur+e}")
            if e == 1: k(f"{wt(0)}v_smfmac_f32_32x32x32_bf16 {vr(O,16)}, {vr(VH,4)}, {vr(oth+8,8)}, v{IDX}\nds_read_b128 {vr(VH,4)}, v{AH} offset:{u*TP}")
            if e == 5: k(f"{wt(1)}v_mfma_f32_32x32x16_bf16 {vr(oth,16)}, {vr(KF,4)}, {vr(Q,4)}, {vr(C,16)}\nds_read_b128 {vr(KF,4)}, v{AK} offset:{(u+2)*TP}")
            if e == 10: k(f"{wt(2)}v_smfmac_f32_32x32x32_bf16 {vr(O,16)}, {vr(VL,4)}, {vr(cur,8)}, v{IDX}\nds_read_b128 {vr(VL,4)}, v{AV} offset:{(u+1)*TP}")
    k(f"""
    v_add_u32 v{AK}, {4*TP}, v{AK}
    v_add_u32 v{AV}, {4*TP}, v{AV}
    v_add_u32 v{AH}, {4*TP}, v{AH}
    s_setpc_b64 s[58:59]
    """)
    k(f"""
    L_LAG:
    s_mov_b32 s39, {SPIN}
    L_CK_POLL:
    s_waitcnt vmcnt(0)
    v_cmp_gt_u32 vcc, 8, v31
    s_sub_u32 s39, s39, 1
    s_cbranch_scc1 L_CK_OUT
    s_cbranch_vccz L_CK_OUT
    s_sleep 2
    global_load_dword v31, v30, s[72:73] sc1
    s_branch L_CK_POLL
    L_CK_OUT:
    s_add_u32 s46, s36, 12
    s_mul_i32 s47, s46, {TP}
    s_lshl_b32 s46, s46, 11
    s_mov_b32 s48, 12
    L_B2:
    s_mov_b32 m0, s47
    s_addk_i32 s47, {4*TP}
    buffer_load_dwordx4 v2, s[28:31], s46 offen sc1 lds
    buffer_load_dwordx4 v2, s[28:31], s46 offen offset:1024 sc1 lds
    s_addk_i32 s46, 8192
    s_sub_u32 s48, s48, 1
    s_cmp_lg_u32 s48, 0
    s_cbranch_scc1 L_B2
    s_branch L_QFIN
    L_LAG2:
    s_waitcnt vmcnt(0)
    """)
    SF(15)
    k("s_barrier\ns_setprio 1")
    ST(5)
    k(f"""
    v_mov_b32 v28, -1
    v_mov_b32 v29, -1
    v_mov_b32 v30, -1
    v_mov_b32 v31, -1
    s_sub_u32 s47, s56, 512
    buffer_store_dwordx4 v[28:31], v3, s[28:31], s56 offen sc1
    buffer_store_dwordx4 v[28:31], v3, s[28:31], s47 offen sc1
    s_add_u32 s46, s55, {HN}
    s_sub_u32 s47, s46, 4096
    buffer_store_dwordx4 v[28:31], v2, s[28:31], s46 offen sc1
    buffer_store_dwordx4 v[28:31], v2, s[28:31], s47 offen sc1
    s_and_b32 s45, s2, 7
    s_mul_i32 s45, s45, 28
    s_lshr_b32 s48, s2, 3
    s_add_u32 s45, s45, s48           ; cb
    s_cmp_eq_u32 s36, 4
    s_cbranch_scc0 L_NOS4
    s_lshl_b32 s47, s53, 8
    s_add_u32 s47, s47, {PSX}
    s_mov_b64 exec, 0xffff
    buffer_store_dwordx4 v[28:31], v2, s[28:31], s47 offen sc1
    s_lshl_b32 s47, s2, {ks-1}
    s_add_u32 s47, s47, {KEY2}
    s_lshl_b32 s46, s45, 7
    s_add_u32 s46, s46, {ACT}
    s_lshl_b32 s39, s53, 6
    s_add_u32 s39, s39, {STAT}
    s_mov_b64 exec, 15
    buffer_store_dwordx4 v[28:31], v2, s[28:31], s39 offen sc1
    s_mov_b64 exec, 1
    buffer_store_dwordx2 v[28:29], v2, s[28:31], s47 offen sc1
    s_cmp_ge_u32 s48, 28
    s_cbranch_scc1 L_NOS4B
    s_mov_b64 exec, 3
    buffer_store_dwordx4 v[28:31], v2, s[28:31], s46 offen sc1
    L_NOS4B:
    s_mov_b64 exec, -1
    L_NOS4:
    s_lshl_b32 s45, s45, 4
    s_and_b32 s47, s36, 3
    s_lshl_b32 s43, s47, 11
    s_mul_i32 s47, s47, {128*3584}
    s_add_u32 s45, s45, s47
    v_mul_u32_u24 v24, 3584, v1
    s_mov_b32 s34, {512*3584}
    s_mov_b32 s35, 0x00020000
    s_mov_b32 s40, {64*3584}
    s_mov_b32 s41, 0
    s_mov_b64 s[14:15], s[62:63]
    s_mov_b64 s[12:13], s[64:65]
    s_cmp_lt_u32 s2, 224
    s_cbranch_scc1 L_UPWG
    s_mov_b64 s[14:15], s[66:67]
    s_mov_b64 s[12:13], s[66:67]
    s_mov_b32 s40, 32768
    s_mov_b32 s41, 0x100000
    s_lshl_b32 s45, s43, 7
    s_lshl_b32 s47, s37, 5
    s_add_u32 s45, s45, s47
    v_lshrrev_b32 v24, 1, v1
    v_lshlrev_b32 v24, 10, v24
    v_and_b32 v25, 1, v1
    v_lshl_add_u32 v24, v25, 4, v24
    L_UPWG:
    """)
    def ffn(i):
        if now in (True, 'ffn'): return
        m, hf = i >> 1, i & 1
        k(f"s_mov_b32 s32, s{14-2*m}\ns_mov_b32 s33, s{15-2*m}\ns_add_u32 m0, s43, {FW + m*8192 + hf*1024}\ns_add_u32 s48, s45, {'s41' if m else 0}\ns_add_u32 s48, s48, {'s40' if hf else 0}\nbuffer_load_dwordx4 v24, s[32:35], s48 offen lds")
    for it in range(16):
        k(call)
        d = it + 1
        if d == 1:
            k("s_waitcnt vmcnt(0)"); signal(4, 28, 29)
        if 1 <= d <= 8: resload(d - 1)
        if d == 9: xwload()
        if d == fat: ffn(0); ffn(1)
        if d == fat + 1: ffn(2); ffn(3)
        if d == wu:
            k(f"""
            s_lshr_b32 s46, s2, 3
            s_and_b32 s47, s2, 7
            s_cmp_eq_u32 s36, 7
            s_cbranch_scc0 L_WU1
            s_mov_b32 s20, s66
            s_mov_b32 s21, s67
            s_mov_b32 s22, {1792*1024}
            v_lshlrev_b32 v28, 10, v1
            s_mul_i32 s46, s46, {56*1024}
            s_lshl_b32 s47, s47, 7
            s_branch L_WU2
            L_WU1:
            s_cmp_eq_u32 s36, 6
            s_cbranch_scc1 L_WU4
            s_cmp_eq_u32 s36, 4
            s_cselect_b32 s20, s62, s64
            s_cselect_b32 s21, s63, s65
            s_mov_b32 s22, {512*3584}
            v_lshrrev_b32 v28, 2, v1
            v_mul_u32_u24 v28, 3584, v28
            v_and_b32 v29, 3, v1
            v_lshl_add_u32 v28, v29, 7, v28
            s_mul_i32 s46, s46, {16*3584}
            s_mul_i32 s47, s47, 448
            L_WU2:
            s_add_u32 s46, s46, s47
            buffer_load_dword v25, v28, s[20:23], s46 offen
            s_branch L_WU3
            L_WU4:
            global_load_dword v25, v2, s[60:61]
            L_WU3:
            """)
        if d == c2at:
            k(f"s_cmp_eq_u32 s36, 6\ns_cbranch_scc0 L_NC2\nv_lshlrev_b32 v30, 7, v1\nv_add_u32 v30, {CNTB+4}, v30\nglobal_load_dword v31, v30, s[72:73] sc1\nL_NC2:")
        if d == c2at + 1:
            k(f"""
            s_cmp_eq_u32 s36, 6
            s_cbranch_scc0 L_C2_OUT
            s_mov_b32 s39, {SPIN}
            s_waitcnt vmcnt(0)
            L_C2_POLL:
            v_cmp_gt_u32 vcc, 16, v31
            s_sub_u32 s39, s39, 1
            s_cbranch_scc1 L_C2_OK
            s_cbranch_vccz L_C2_OK
            s_sleep 8
            global_load_dword v31, v30, s[72:73] sc1
            s_waitcnt vmcnt(0)
            s_branch L_C2_POLL
            L_C2_OK:
            v_mov_b32 v30, {C2F}
            ds_write_b32 v30, v30
            L_C2_OUT:
            """)
    k("s_branch L_DONE")
    k(f"""
    L_RETRY:
    s_mov_b32 s44, 1
    v_mov_b32 v28, 0xff800000
    s_mov_b32 s47, 0
    L_RMAX:
    buffer_load_dwordx4 {vr(KF,4)}, v2, s[28:31], s47 offen sc1
    s_add_u32 s47, s47, 2048
    s_waitcnt vmcnt(0)
    v_mfma_f32_32x32x16_bf16 {vr(SA,16)}, {vr(KF,4)}, {vr(Q,4)}, 0
    s_nop 11
    """)
    for i in range(8): k(f"v_max3_f32 v28, v28, v{SA+2*i}, v{SA+2*i+1}")
    k("s_cmp_lt_u32 s47, 0x20000\ns_cbranch_scc1 L_RMAX")
    allreduce_halves(k, 28, 29, 'v_max_f32')
    k(f"v_sub_f32 v{C}, 0, v28")
    for i in range(1, 16): k(f"v_mov_b32 v{C+i}, v{C}")
    for i in range(16): k(f"v_mov_b32 v{O+i}, 0")
    k(f"""
    v_cmp_eq_u32 vcc, 16, v27
    v_mov_b32 v28, 0x3f803f80
    v_mov_b32 v29, 0
    v_cndmask_b32 v28, v29, v28, vcc
    """)
    for i in range(4): k(f"v_mov_b32 v{VL+i}, v28\nv_mov_b32 v{VH+i}, v28")
    k(f"""
    s_mov_b32 s47, 0
    L_RLOOP:
    buffer_load_dwordx4 {vr(KF,4)}, v2, s[28:31], s47 offen sc1
    s_mov_b32 exec_lo, 0xffff
    s_mov_b32 exec_hi, 0xffff
    buffer_load_dwordx4 {vr(VL,4)}, v26, s[28:31], s47 offen sc1
    buffer_load_dwordx4 {vr(VH,4)}, v26, s[28:31], s47 offen offset:512 sc1
    s_mov_b64 exec, -1
    s_add_u32 s47, s47, 2048
    s_waitcnt vmcnt(0)
    v_mfma_f32_32x32x16_bf16 {vr(SA,16)}, {vr(KF,4)}, {vr(Q,4)}, {vr(C,16)}
    s_nop 11
    """)
    for e in range(16): k(f"v_exp_f32 v{SA+e}, v{SA+e}")
    k(f"""
    s_nop 1
    v_smfmac_f32_32x32x32_bf16 {vr(O,16)}, {vr(VL,4)}, {vr(SA,8)}, v{IDX}
    v_smfmac_f32_32x32x32_bf16 {vr(O,16)}, {vr(VH,4)}, {vr(SA+8,8)}, v{IDX}
    s_cmp_lt_u32 s47, 0x20000
    s_cbranch_scc1 L_RLOOP
    s_branch L_FINISH
    L_CODE_END:
    """)
    return k

def build(k, path):
    s = f"; @launch grid=({k.grid},1,1) block=({k.block},1,1) lds={k.lds}\n"
    s += '.amdgcn_target "amdgcn-amd-amdhsa--gfx950"\n.text\n' + k.text() + '.section .rodata,"a"\n.p2align 6\n' + k.desc()
    open(path, 'w').write(s)
    import hz
    print(path, 'hazards:', hz.check(s))
if __name__ == '__main__':
    build(fused(), 'v15.s')
    import stamp
    build(stamp.instrument(fused(stamps=True), 0), 'v15t.s')
    build(stamp.instrument(fused(stamps='front'), 0), 'v15f.s')
```
